```python
import torch

def _softmax(x, axis=-1):
    return torch.softmax(x, dim=axis)

def _gelu(x):
    return torch.nn.functional.gelu(x, approximate='tanh')

def _silu(x):
    return torch.nn.functional.silu(x)

def _sigmoid(x):
    return torch.sigmoid(x)

def _layernorm(x, axis=-1, eps=1e-05):
    m = x.mean(dim=axis, keepdim=True)
    v = x.var(dim=axis, keepdim=True, unbiased=False)
    return (x - m) / torch.sqrt(v + eps)

def _scatter_add(tgt, idx, src, axis=0):
    return tgt.clone().index_add_(axis, idx, src)

def _segment_sum(src, seg, n):
    out = torch.zeros((n,) + src.shape[1:], dtype=src.dtype)
    return out.index_add_(0, seg, src)

def _pad(x, pw):
    flat = tuple((v for pair in reversed(pw) for v in pair))
    return torch.nn.functional.pad(x, flat)
kernel_name = 'gated_mix__memory_aug_recurrent_mem_tr__glu_gated_geglu__prompt'

def setup_inputs():

    _w = lambda a: (lambda t: t.to(torch.bfloat16) if t.is_floating_point() else t)(torch.as_tensor(a))

    def _A_setup():
        B, S, Dm = (1, 2048, 640)
        H, Dh = (32, 128)
        M, seg = (8, 32)
        seg = min(seg, S)
        S = S // seg * seg
        return {'x': _w((lambda *s: torch.randn(*s, dtype=torch.bfloat16) * 0.05)(B, S, Dm)), 'mem0': _w((lambda *s: torch.randn(*s, dtype=torch.bfloat16) * 0.4)(B, M, Dm)), 'Wq': _w((lambda *s: torch.randn(*s, dtype=torch.bfloat16) * 6.4)(Dm, H, Dh) * Dm ** (-0.5)), 'Wk': _w((lambda *s: torch.randn(*s, dtype=torch.bfloat16) * 6.4)(Dm, H, Dh) * Dm ** (-0.5)), 'Wv': _w((lambda *s: torch.randn(*s, dtype=torch.bfloat16) * 0.4)(Dm, H, Dh) * Dm ** (-0.5)), 'Wo': _w((lambda *s: torch.randn(*s, dtype=torch.bfloat16) * 0.4)(H, Dh, Dm) * (H * Dh) ** (-0.5)), 'seg_len': seg}
    _A_in = _A_setup()

    def _B_setup():
        B, S, Dm, Df = (1, 2048, 640, 1728)
        return {'x': _w((lambda *s: torch.randn(*s, dtype=torch.bfloat16) * 0.05)(B, S, Dm)), 'w_gate': _w((lambda *s: torch.randn(*s, dtype=torch.bfloat16) * 1.6)(Dm, Df) * Dm ** (-0.5)), 'w_up': _w((lambda *s: torch.randn(*s, dtype=torch.bfloat16) * 1.6)(Dm, Df) * Dm ** (-0.5)), 'w_down': _w((lambda *s: torch.randn(*s, dtype=torch.bfloat16) * 1.6)(Df, Dm) * Df ** (-0.5))}
    _B_in = _B_setup()
    return {'A_x': _A_in['x'], 'A_mem0': _A_in['mem0'], 'A_Wq': _A_in['Wq'], 'A_Wk': _A_in['Wk'], 'A_Wv': _A_in['Wv'], 'A_Wo': _A_in['Wo'], 'A_seg_len': _A_in['seg_len'], 'B_x': _B_in['x'], 'B_w_gate': _B_in['w_gate'], 'B_w_up': _B_in['w_up'], 'B_w_down': _B_in['w_down'], 'gate_w': _w((lambda *s: torch.randn(*s, dtype=torch.bfloat16) * 0.05)(640) * 16.0)}

def reference(A_x, A_mem0, A_Wq, A_Wk, A_Wv, A_Wo, A_seg_len, B_x, B_w_gate, B_w_up, B_w_down, gate_w):

    def _A_ref(x, mem0, Wq, Wk, Wv, Wo, seg_len):
        B, S, Dm = x.shape
        H, Dh = (Wq.shape[1], Wq.shape[2])
        M = mem0.shape[1]
        scale = Dh ** (-0.5)
        n_seg = S // seg_len
        L = M + seg_len
        idx = torch.arange(L)
        mask = (idx[:, None] < M) | (idx[:, None] >= idx[None, :])
        mem = mem0
        outs = []
        for s in range(n_seg):
            xs = x[:, s * seg_len:(s + 1) * seg_len, :].clone()
            h = torch.concatenate([mem, xs], axis=1)
            q = torch.einsum('btd,dhe->bhte', h, Wq)
            k = torch.einsum('btd,dhe->bhte', h, Wk)
            v = torch.einsum('btd,dhe->bhte', h, Wv)
            scores = torch.einsum('bhqe,bhke->bhqk', q, k) * scale
            scores = torch.where(mask[None, None], scores, -1000000000.0)
            p = _softmax(scores, axis=-1)
            o = torch.einsum('bhqk,bhke->bhqe', p, v)
            o = torch.einsum('bhte,hed->btd', o, Wo)
            mem = o[:, :M, :].clone()
            outs.append(o[:, M:, :])
        return torch.concatenate(outs, axis=1)

    def _B_ref(x, w_gate, w_up, w_down):
        g = torch.einsum('bsd,df->bsf', x, w_gate)
        u = torch.einsum('bsd,df->bsf', x, w_up)
        h = _gelu(g) * u
        return torch.einsum('bsf,fd->bsd', h, w_down)
    x = A_x
    g = _sigmoid((x * gate_w).sum(-1, keepdims=True))
    a = _A_ref(x, A_mem0, A_Wq, A_Wk, A_Wv, A_Wo, A_seg_len)
    b = _B_ref(x, B_w_gate, B_w_up, B_w_down)
    return g * a + (1 - g) * b
```

```python
KN = "gated_mix__memory_aug_recurrent_mem_tr__glu_gated_geglu__prompt"
S, DM, H, DH, M, SEG, DF = 2048, 640, 32, 128, 8, 32, 1728
NSEG = S // SEG
KA = dict(x=0, mem0=8, Wq=16, Wk=24, Wv=32, Wo=40, seglen=48, Bx=56, wg=64, wu=72, wd=80, gw=88, out=96, dbg=104, ws=112)
WS_BYTES = 268435456
_off = 0
WS = {}
def _alloc(name, nbytes):
    global _off
    WS[name] = _off
    _off += (nbytes + 4095) // 4096 * 4096
_alloc("WQF", 256 * 20 * 1024)
_alloc("WKF", 256 * 20 * 1024)
_alloc("WVF", 256 * 20 * 1024)
_alloc("WOF", 40 * 128 * 1024)
_alloc("WGF", 108 * 20 * 1024)
_alloc("WUF", 108 * 20 * 1024)
_alloc("WDF", 40 * 54 * 1024)
_alloc("QX", NSEG * H * 8192)
_alloc("KX", NSEG * H * 8192)
_alloc("VX", NSEG * H * 8192)
_alloc("KM", NSEG * H * 4096)
_alloc("VM", NSEG * H * 4096)
_alloc("OX", 128 * 128 * 1024)
_alloc("HF", 128 * 54 * 1024)
_alloc("GATE", 2048 * 4)
COMM0 = _off
_alloc("MEMB", 2 * 65 * 10240)
_alloc("OEX", 64 * 8 * 8192)
PSZ = 128 * 512 + 32 * 2048
_alloc("PL", 2 * 2 * PSZ)
_alloc("PR", 2 * 2 * PSZ)
_alloc("FLAGS", 8192)
COMM1 = _off
assert _off < WS_BYTES

class Asm:
    def __init__(self):
        self.L = []
        self.uid = 0
    def __call__(self, s):
        for line in s.split("\n"):
            line = line.strip()
            if not line:
                continue
            if line.endswith(":") or line.startswith("."):
                self.L.append(line)
            else:
                self.L.append("    " + line)
    def label(self, base):
        self.uid += 1
        return f"L_{base}_{self.uid}"
    def srd(self, d, lo, size):
        self(f"s_mov_b32 s{d}, s{lo}\ns_mov_b32 s{d+1}, s{lo+1}\ns_mov_b32 s{d+2}, {size}\ns_mov_b32 s{d+3}, 0x00020000")
    def kernel_begin(self, name):
        self(f".globl {name}\n.p2align 8\n.type {name},@function\n{name}:")
    def text(self):
        return "\n".join(self.L) + "\n"

def kd(name, vgpr, sgpr, accum):
    return (f".p2align 6\n.amdhsa_kernel {name}\n  .amdhsa_next_free_vgpr {vgpr}\n  .amdhsa_next_free_sgpr {sgpr}\n"
            f"  .amdhsa_accum_offset {accum}\n  .amdhsa_group_segment_fixed_size 0\n  .amdhsa_kernarg_size 120\n"
            f"  .amdhsa_user_sgpr_count 2\n  .amdhsa_user_sgpr_kernarg_segment_ptr 1\n  .amdhsa_system_sgpr_workgroup_id_x 1\n.end_amdhsa_kernel")
```

```python
from common import *
GRID = NSEG * H // 4
SCALE_LOG2E = (128 ** -0.5) * 1.4426950408889634
Q0 = 8
KX0 = 40
KM0 = 72
V0 = 88
SC = 140
PP = 160
OA = 172
T = 188

def f32bits(x):
    import struct
    return struct.unpack("<I", struct.pack("<f", x))[0]

def gen(a):
    name = "attn_kernel"
    a.kernel_begin(name)
    a(f"s_cmp_ge_u32 s2, {GRID}\ns_cbranch_scc1 L_at_done")
    a(f"s_load_dwordx2 s[4:5], s[0:1], {KA['ws']}")
    a("s_waitcnt lgkmcnt(0)")
    a.srd(8, 4, WS_BYTES)
    a("v_lshrrev_b32 v1, 6, v0\ns_nop 0\nv_readfirstlane_b32 s16, v1\nv_and_b32 v0, 63, v0")
    a("s_lshl_b32 s17, s2, 2\ns_add_u32 s17, s17, s16")
    a("v_and_b32 v1, 15, v0\nv_lshrrev_b32 v2, 4, v0\nv_lshlrev_b32 v3, 4, v0\nv_lshlrev_b32 v4, 3, v0")
    a(f"s_lshl_b32 s18, s17, 13\ns_add_u32 s20, s18, {WS['QX']}\ns_add_u32 s21, s18, {WS['KX']}\ns_add_u32 s22, s18, {WS['VX']}")
    a(f"s_lshl_b32 s18, s17, 12\ns_add_u32 s23, s18, {WS['KM']}\ns_add_u32 s24, s18, {WS['VM']}")
    a("s_add_u32 s25, s20, 4096\ns_add_u32 s26, s21, 4096\ns_add_u32 s27, s22, 4096")
    for i in range(4):
        a(f"buffer_load_dwordx4 v[{KM0+4*i}:{KM0+4*i+3}], v3, s[8:11], s23 offen offset:{1024*i}")
    for i in range(8):
        a(f"buffer_load_dwordx4 v[{Q0+4*i}:{Q0+4*i+3}], v3, s[8:11], s{20 if i < 4 else 25} offen offset:{1024*(i%4)}")
    for i in range(8):
        a(f"buffer_load_dwordx4 v[{KX0+4*i}:{KX0+4*i+3}], v3, s[8:11], s{21 if i < 4 else 26} offen offset:{1024*(i%4)}")
    for i in range(8):
        a(f"buffer_load_dwordx2 v[{V0+6*i}:{V0+6*i+1}], v4, s[8:11], s24 offen offset:{512*i}")
        a(f"buffer_load_dwordx4 v[{V0+6*i+2}:{V0+6*i+5}], v3, s[8:11], s{22 if i < 4 else 27} offen offset:{1024*(i%4)}")
    a(f"v_mov_b32 v{V0+48}, 0\nv_mov_b32 v{V0+49}, 0")
    a("v_cmp_gt_u32 s[28:29], 2, v2\nv_lshlrev_b32 v5, 2, v2")
    for r in range(4):
        a(f"v_add_u32 v6, {r}, v5\nv_cmp_le_u32 s[{30+2*r}:{31+2*r}], v6, v1")
    a("s_lshr_b32 s18, s17, 5\ns_lshl_b32 s18, s18, 18\ns_and_b32 s19, s17, 31\ns_lshl_b32 s19, s19, 12\ns_add_u32 s18, s18, s19")
    a(f"s_add_u32 s40, s18, {WS['OX']}\ns_add_u32 s41, s40, {128*1024}")
    a("s_waitcnt vmcnt(16)")
    def q(t, i): return f"v[{Q0+16*t+4*i}:{Q0+16*t+4*i+3}]"
    tiles = [(0, KM0), (0, KX0), (1, KM0), (1, KX0), (1, KX0+16)]
    for i in range(4):
        for ti, (t, kb) in enumerate(tiles):
            d = SC + 4*ti
            c = "0" if i == 0 else f"v[{d}:{d+3}]"
            a(f"v_mfma_f32_16x16x32_bf16 v[{d}:{d+3}], v[{kb+4*i}:{kb+4*i+3}], {q(t, i)}, {c}")
    a(f"v_mov_b32 v{T}, 0xff800000\nv_mov_b32 v{T+1}, {hex(f32bits(SCALE_LOG2E))}")
    a("s_nop 7\ns_nop 3")
    for ti in (0, 2):
        for r in range(4):
            a(f"v_cndmask_b32 v{SC+4*ti+r}, v{T}, v{SC+4*ti+r}, s[28:29]")
    for ti in (1, 4):
        for r in range(4):
            a(f"v_cndmask_b32 v{SC+4*ti+r}, v{T}, v{SC+4*ti+r}, s[{30+2*r}:{31+2*r}]")
    groups = [list(range(SC, SC+8)), list(range(SC+8, SC+20))]
    for gi, regs in enumerate(groups):
        m = T + 2 + 2*gi; m2 = m + 1
        a(f"v_max_f32 v{m}, v{regs[0]}, v{regs[1]}")
        for i in range(2, len(regs), 2):
            a(f"v_max3_f32 v{m}, v{m}, v{regs[i]}, v{regs[i+1]}")
        a(f"v_mov_b32 v{m2}, v{m}\ns_nop 1\nv_permlane16_swap_b32 v{m}, v{m2}\nv_max_f32 v{m}, v{m}, v{m2}")
        a(f"v_mov_b32 v{m2}, v{m}\ns_nop 1\nv_permlane32_swap_b32 v{m}, v{m2}\nv_max_f32 v{m}, v{m}, v{m2}")
        a(f"v_mul_f32 v{m}, v{m}, v{T+1}")
        for r in regs:
            a(f"v_fma_f32 v{r}, v{r}, v{T+1}, -v{m}")
        for r in regs:
            a(f"v_exp_f32 v{r}, v{r}")
        a("s_nop 0")
        a(f"v_add_f32 v{m}, v{regs[0]}, v{regs[1]}")
        for r in regs[2:]:
            a(f"v_add_f32 v{m}, v{m}, v{r}")
        a(f"v_mov_b32 v{m2}, v{m}\ns_nop 1\nv_permlane16_swap_b32 v{m}, v{m2}\nv_add_f32 v{m}, v{m}, v{m2}")
        a(f"v_mov_b32 v{m2}, v{m}\ns_nop 1\nv_permlane32_swap_b32 v{m}, v{m2}\nv_add_f32 v{m}, v{m}, v{m2}")
        a(f"v_rcp_f32 v{m}, v{m}\ns_nop 0")
        for r in regs:
            a(f"v_mul_f32 v{r}, v{r}, v{m}")
        pb = PP + 4*gi
        for i in range(0, len(regs), 2):
            a(f"v_cvt_pk_bf16_f32 v{pb+i//2}, v{regs[i]}, v{regs[i+1]}")
    a(f"v_mov_b32 v{PP+10}, 0\nv_mov_b32 v{PP+11}, 0")
    a("s_waitcnt vmcnt(0)")
    for t in range(2):
        for i in range(4):
            for h in range(2):
                et = 2*i + h
                d = OA + 4*h
                R = V0 + 6*et
                a(f"v_mfma_f32_16x16x32_bf16 v[{d}:{d+3}], v[{R}:{R+3}], v[{PP+4*t}:{PP+4*t+3}], 0")
                if t == 1:
                    a(f"v_mfma_f32_16x16x32_bf16 v[{d}:{d+3}], v[{R+4}:{R+7}], v[{PP+8}:{PP+11}], v[{d}:{d+3}]")
            a("s_nop 7\ns_nop 3")
            o = OA + 8 + 4*((t*4+i) % 2)
            a(f"v_cvt_pk_bf16_f32 v{o}, v{OA}, v{OA+1}\nv_cvt_pk_bf16_f32 v{o+1}, v{OA+2}, v{OA+3}")
            a(f"v_cvt_pk_bf16_f32 v{o+2}, v{OA+4}, v{OA+5}\nv_cvt_pk_bf16_f32 v{o+3}, v{OA+6}, v{OA+7}")
            a(f"buffer_store_dwordx4 v[{o}:{o+3}], v3, s[8:11], s{40+t} offen offset:{1024*i}")
    a("L_at_done:\ns_endpgm")
    return name, GRID, 256, 0, kd(name, 208, 64, 208)
```

```python
from common import *
GRID = 256
L_MEM = 0
L_QK = L_MEM + 8 * 1344
L_OB = L_QK + 8192
L_KX = L_OB + 8192
L_MISC = L_KX + 16384
L_WO = L_MISC + 512
LDS = L_WO + 81920
MSTR = 1344
SCALE_LOG2E = (128 ** -0.5) * 1.4426950408889634

def f32bits(x):
    import struct
    return struct.unpack("<I", struct.pack("<f", x))[0]

def gen(a):
    name = "chain_kernel"
    a.kernel_begin(name)
    a(f"s_cmp_ge_u32 s2, {GRID}\ns_cbranch_scc1 L_ch_done")
    a(f"s_load_dwordx2 s[4:5], s[0:1], {KA['ws']}\ns_load_dwordx2 s[6:7], s[0:1], {KA['dbg']}\ns_load_dwordx2 s[52:53], s[0:1], {KA['mem0']}")
    a("s_waitcnt lgkmcnt(0)")
    a.srd(8, 4, WS_BYTES)
    a.srd(12, 6, 256)
    a.srd(56, 52, 10240)
    a("v_lshrrev_b32 v1, 6, v0\ns_nop 0\nv_readfirstlane_b32 s16, v1\nv_and_b32 v0, 63, v0")
    a("s_getreg_b32 s34, hwreg(HW_REG_XCC_ID)\ns_and_b32 s34, s34, 15")
    a("s_cmp_ge_u32 s34, 2\ns_cbranch_scc1 L_ch_done")
    a("s_cmp_lg_u32 s16, 0\ns_cbranch_scc1 L_ch_tk")
    a("s_mov_b64 exec, 1\nv_mov_b32 v3, s34\nv_lshlrev_b32 v3, 2, v3\nv_mov_b32 v4, 1")
    a("buffer_atomic_add v4, v3, s[12:15], 0 offen sc0\ns_waitcnt vmcnt(0)")
    a(f"v_mov_b32 v3, {L_MISC}\nds_write_b32 v3, v4\ns_waitcnt lgkmcnt(0)\ns_mov_b64 exec, -1")
    a("L_ch_tk:\ns_barrier")
    a(f"v_mov_b32 v3, {L_MISC}\nds_read_b32 v4, v3\ns_waitcnt lgkmcnt(0)\nv_readfirstlane_b32 s35, v4\ns_barrier")
    a("s_cmp_ge_u32 s35, 32\ns_cbranch_scc1 L_ch_done")
    a("s_lshr_b32 s36, s35, 1\ns_lshl_b32 s18, s34, 4\ns_add_u32 s36, s36, s18")
    a("s_and_b32 s37, s35, 1")
    a("s_lshr_b32 s38, s35, 3\ns_and_b32 s39, s35, 7")
    a("s_lshl_b32 s40, s34, 2\ns_add_u32 s40, s40, s38")
    a("v_and_b32 v1, 15, v0\nv_lshrrev_b32 v2, 4, v0")
    a("v_cmp_gt_u32 s[20:21], 8, v1\nv_cmp_gt_u32 s[22:23], 8, v0\nv_cmp_gt_u32 s[24:25], 32, v0")
    a("v_lshlrev_b32 v8, 4, v0")
    a("s_lshl_b32 s18, s36, 3\ns_lshl_b32 s19, s16, 1\ns_add_u32 s18, s18, s19\ns_mul_i32 s18, s18, 20480")
    a(f"s_add_u32 s41, s18, {WS['WQF']}\ns_add_u32 s42, s18, {WS['WKF']}")
    a("s_lshl_b32 s18, s36, 3\ns_lshl_b32 s19, s37, 2\ns_add_u32 s18, s18, s19\ns_add_u32 s18, s18, s16\ns_mul_i32 s18, s18, 20480")
    a(f"s_add_u32 s43, s18, {WS['WVF']}")
    def wload(dst, sbase, nfr, first):
        for f in range(nfr):
            ff = first + f
            blk, rem = divmod(ff, 4)
            a(f"s_add_u32 s44, s{sbase}, {blk*4096}")
            a(f"buffer_load_dwordx4 {dst(f)}, v8, s[8:11], s44 offen offset:{rem*1024}")
    wload(lambda f: f"a[{4*f}:{4*f+3}]", 41, 40, 0)
    a("s_waitcnt vmcnt(20)")
    wload(lambda f: f"a[{160+4*f}:{163+4*f}]", 42, 20, 0)
    a("s_waitcnt vmcnt(20)")
    wload(lambda f: f"v[{176+4*f}:{179+4*f}]", 42, 20, 20)
    a("s_waitcnt vmcnt(20)")
    wload(lambda f: f"v[{96+4*f}:{99+4*f}]", 43, 20, 0)
    a("s_mul_i32 s18, s39, 5\ns_lshl_b32 s18, s18, 7\ns_lshl_b32 s19, s40, 4\ns_add_u32 s18, s18, s19\ns_lshl_b32 s19, s16, 2\ns_add_u32 s18, s18, s19\ns_lshl_b32 s18, s18, 10")
    a(f"s_add_u32 s44, s18, {WS['WOF']}")
    a("s_lshl_b32 s45, s16, 12")
    for t in range(5):
        a(f"s_add_u32 s46, s44, {t*128*1024}\ns_add_u32 s47, s45, {L_WO + t*16384}\ns_mov_b32 m0, s47\ns_nop 0")
        for k in range(4):
            a(f"buffer_load_dwordx4 v8, s[8:11], s46 offen offset:{k*1024} lds")
    a("s_mul_i32 s18, s16, 2560\nv_add_u32 v3, s18, v8")
    for i in range(3):
        a(f"v_add_u32 v24, {1024*i}, v8\nv_mov_b32 v25, 1280\nv_cmp_le_u32 vcc, v25, v24\ns_nop 1")
        a(f"v_mov_b32 v26, {MSTR-1280}\nv_cndmask_b32 v26, 0, v26, vcc\nv_add_u32 v24, v24, v26")
        a(f"s_mul_i32 s18, s16, {2*MSTR}\ns_add_u32 s18, s18, {L_MEM}\nv_add_u32 v{4+i}, s18, v24")
    a(f"v_and_b32 v24, 7, v1\nv_mul_u32_u24 v24, {MSTR}, v24\nv_lshlrev_b32 v25, 4, v2\nv_add3_u32 v7, v24, v25, {L_MEM}" if False else
      f"v_and_b32 v24, 7, v1\nv_mul_u32_u24 v24, {MSTR}, v24\nv_lshlrev_b32 v25, 4, v2\nv_add_u32 v7, v24, v25\nv_add_u32 v7, {L_MEM}, v7")
    a(f"s_lshl_b32 s18, s16, 14\ns_add_u32 s18, s18, {L_WO}\nv_add_u32 v9, s18, v8")
    a(f"s_lshl_b32 s18, s16, 12\ns_add_u32 s18, s18, {L_WO+4*16384}\nv_add_u32 v10, s18, v8")
    a("s_and_b32 s18, s35, 7\ns_lshl_b32 s18, s18, 1\ns_lshr_b32 s19, s16, 1\ns_add_u32 s18, s18, s19\ns_lshl_b32 s18, s18, 9")
    a("s_and_b32 s19, s16, 1\ns_lshl_b32 s19, s19, 3\ns_add_u32 s18, s18, s19")
    a("v_lshlrev_b32 v24, 6, v1\nv_lshlrev_b32 v25, 4, v2\nv_add3_u32 v11, v24, v25, s18")
    a("s_lshl_b32 s18, s16, 11\nv_add_u32 v12, s18, v8")
    a(f"v_and_b32 v24, 7, v1\nv_lshlrev_b32 v24, 6, v24\nv_lshlrev_b32 v25, 4, v2\nv_add_u32 v13, v24, v25\nv_add_u32 v13, {L_OB}, v13")
    a("s_lshl_b32 s18, s39, 2\ns_add_u32 s18, s18, s16\ns_lshl_b32 s18, s18, 2\nv_add_u32 v24, s18, v2\nv_lshlrev_b32 v24, 9, v24")
    a("s_lshl_b32 s18, s38, 7\nv_lshlrev_b32 v25, 4, v1\nv_add3_u32 v14, v24, v25, s18")
    a("s_lshl_b32 s18, s39, 2\nv_add_u32 v24, s18, v2\nv_lshlrev_b32 v24, 11, v24")
    a("s_lshl_b32 s18, s38, 7\ns_lshl_b32 s19, s16, 9\ns_add_u32 s18, s18, s19\ns_add_u32 s18, s18, 65536\nv_add3_u32 v15, v24, v25, s18")
    a(f"s_mul_i32 s18, s34, {PSZ}\ns_add_u32 s18, s18, {WS['PL']}")
    a(f"s_xor_b32 s19, s34, 1\ns_mul_i32 s19, s19, {PSZ}\ns_add_u32 s19, s19, {WS['PR']}")
    a("v_mov_b32 v24, s19\nv_mov_b32 v25, s18\nv_cndmask_b32 v24, v24, v25, s[24:25]")
    a("v_and_b32 v25, 31, v0\nv_lshlrev_b32 v25, 4, v25\nv_add_u32 v24, v24, v25")
    a("s_lshl_b32 s18, s35, 2\ns_add_u32 s18, s18, s16\ns_lshl_b32 s18, s18, 9\nv_add_u32 v16, s18, v24")
    a("s_lshl_b32 s18, s35, 11\ns_add_u32 s18, s18, 65536\nv_add_u32 v17, s18, v24")
    a("s_lshl_b32 s18, s35, 2\ns_add_u32 s18, s18, s16")
    a("s_lshr_b32 s19, s18, 4\ns_mul_i32 s19, s19, 160\ns_and_b32 s18, s18, 15\ns_lshl_b32 s18, s18, 3\ns_add_u32 s18, s18, s19")
    a("v_mul_u32_u24 v24, 1280, v0\nv_add_u32 v18, s18, v24")
    a("s_lshr_b32 s19, s35, 2\ns_mul_i32 s19, s19, 160\ns_and_b32 s18, s35, 3\ns_lshl_b32 s18, s18, 3\ns_add_u32 s18, s18, s19\ns_add_u32 s18, s18, 128")
    a("v_add_u32 v19, s18, v24")
    a("s_lshl_b32 s18, s37, 2\ns_add_u32 s18, s18, s16\ns_lshl_b32 s19, s18, 10\nv_add_u32 v21, s19, v8")
    a("s_lshl_b32 s19, s18, 9\nv_lshlrev_b32 v24, 3, v0\nv_add_u32 v23, s19, v24")
    a("s_lshl_b32 s19, s16, 10\nv_add_u32 v22, s19, v8")
    a("s_lshl_b32 s19, s16, 11\nv_add_u32 v20, s19, v8")
    a(f"s_lshl_b32 s18, s36, 13\ns_add_u32 s47, s18, {WS['KX']}\ns_add_u32 s48, s18, {WS['VX']}")
    a(f"s_lshl_b32 s18, s36, 12\ns_add_u32 s49, s18, {WS['KM']}\ns_add_u32 s50, s18, {WS['VM']}")
    a(f"s_mul_i32 s41, s34, {65*10240}\ns_add_u32 s41, s41, {WS['MEMB']}")
    a(f"s_lshl_b32 s42, s40, 13\ns_add_u32 s42, s42, {WS['OEX']}")
    a("s_mov_b32 s17, 0\ns_mov_b32 s51, 0")
    def kx_prefetch():
        a(f"s_and_b32 s18, s54, 1\ns_lshl_b32 s18, s18, 13\ns_lshl_b32 s19, s16, 11\ns_add_u32 s18, s18, s19\ns_add_u32 s18, s18, {L_KX}\ns_mov_b32 m0, s18\ns_nop 0")
        a("buffer_load_dwordx4 v20, s[8:11], s47 offen lds\nbuffer_load_dwordx4 v20, s[8:11], s47 offen offset:1024 lds")
        a("buffer_load_dwordx4 v[92:95], v21, s[8:11], s48 offen")
    a("s_mov_b32 s54, 0")
    kx_prefetch()
    a("s_waitcnt vmcnt(0)\ns_barrier")

    a("L_ch_step:")
    a("L_ch_gpoll:")
    a("buffer_load_dwordx4 v[24:27], v3, s[56:59], s51 offen sc1\nbuffer_load_dwordx4 v[28:31], v3, s[56:59], s51 offen offset:1024 sc1")
    a("s_mov_b64 exec, s[24:25]\nbuffer_load_dwordx4 v[32:35], v3, s[56:59], s51 offen offset:2048 sc1\ns_mov_b64 exec, -1")
    a("s_waitcnt vmcnt(0)")
    a("v_max_u32 v36, v24, v25\nv_max3_u32 v36, v36, v26, v27\nv_max3_u32 v36, v36, v28, v29\nv_max3_u32 v36, v36, v30, v31")
    a("v_max_u32 v37, v32, v33\nv_max3_u32 v37, v37, v34, v35\nv_cndmask_b32 v37, 0, v37, s[24:25]\nv_max_u32 v36, v36, v37")
    a("v_cmp_eq_u32 vcc, -1, v36\ns_cbranch_vccnz L_ch_gpoll")
    a("ds_write_b128 v4, v[24:27]\nds_write_b128 v5, v[28:31]")
    a("s_mov_b64 exec, s[24:25]\nds_write_b128 v6, v[32:35]\ns_mov_b64 exec, -1")
    a("s_waitcnt lgkmcnt(0)\ns_barrier")
    a("s_mov_b32 s56, s8\ns_mov_b32 s57, s9\ns_mov_b32 s58, s10")
    a("s_lshr_b32 s60, s17, 1\ns_and_b32 s60, s60, 1")
    a(f"s_and_b32 s18, s17, 1\ns_mul_i32 s46, s18, {2*PSZ}")
    a(f"s_mul_i32 s18, s34, {PSZ}\ns_add_u32 s18, s18, s46\ns_add_u32 s43, s18, {WS['PL']}\ns_add_u32 s44, s18, {WS['PR']}")
    BB = [44, 48, 52, 56]
    for i in range(16):
        a(f"v_mov_b32 v{24+i}, 0")
    for j in range(3):
        a(f"ds_read_b128 v[{BB[j]}:{BB[j]+3}], v7 offset:{64*j}")
    for ks in range(20):
        if ks + 3 < 20:
            b = BB[(ks + 3) % 4]
            a(f"ds_read_b128 v[{b}:{b+3}], v7 offset:{64*(ks+3)}")
            a("s_waitcnt lgkmcnt(3)")
        else:
            a(f"s_waitcnt lgkmcnt({19-ks})")
        b = BB[ks % 4]
        a(f"v_mfma_f32_16x16x32_bf16 v[24:27], a[{4*ks}:{4*ks+3}], v[{b}:{b+3}], v[24:27]")
        a(f"v_mfma_f32_16x16x32_bf16 v[28:31], a[{80+4*ks}:{83+4*ks}], v[{b}:{b+3}], v[28:31]")
        a(f"v_mfma_f32_16x16x32_bf16 v[32:35], a[{160+4*ks}:{163+4*ks}], v[{b}:{b+3}], v[32:35]")
        a(f"v_mfma_f32_16x16x32_bf16 v[36:39], v[{176+4*ks}:{179+4*ks}], v[{b}:{b+3}], v[36:39]")
    a("s_nop 7")
    for t in range(4):
        a(f"v_cvt_pk_bf16_f32 v{44+2*t}, v{24+4*t}, v{25+4*t}\nv_cvt_pk_bf16_f32 v{45+2*t}, v{26+4*t}, v{27+4*t}")
    a(f"ds_write_b128 v22, v[44:47] offset:{L_QK}\nds_write_b128 v22, v[48:51] offset:{L_QK+4096}")
    a("s_cmp_lg_u32 s37, 0\ns_cbranch_scc1 L_ch_nokm")
    a("buffer_store_dwordx4 v[48:51], v22, s[8:11], s49 offen")
    a("L_ch_nokm:")
    VB = [240, 244, 248, 252]
    def v_reads(lo, hi):
        for ks in range(lo, hi):
            b = VB[ks % 4]
            a(f"ds_read_b128 a[{b}:{b+3}], v7 offset:{64*ks}")
    a("v_mov_b32 v40, 0\nv_mov_b32 v41, 0\nv_mov_b32 v42, 0\nv_mov_b32 v43, 0")
    a(f"s_cmp_eq_u32 s17, {NSEG-1}\ns_cbranch_scc1 L_ch_last")
    a("s_waitcnt lgkmcnt(0)\ns_barrier")
    a(f"s_and_b32 s18, s17, 1\ns_lshl_b32 s18, s18, 13\ns_add_u32 s18, s18, {L_KX}\nv_add_u32 v76, s18, v8")
    for i in range(4):
        a(f"ds_read_b128 v[{24+4*i}:{27+4*i}], v8 offset:{L_QK+1024*i}")
        a(f"ds_read_b128 v[{44+4*i}:{47+4*i}], v8 offset:{L_QK+4096+1024*i}")
    for i in range(8):
        a(f"ds_read_b128 v[{60+4*i if i < 4 else 80+4*(i-4) if i < 7 else 76}:{(60+4*i if i < 4 else 80+4*(i-4) if i < 7 else 76)+3}], v76 offset:{1024*i}" if i < 7 else "")
    a(f"ds_read_b128 a[240:243], v76 offset:{1024*7}")
    kxr = [f"v[{60+4*i}:{63+4*i}]" for i in range(4)] + [f"v[{80+4*i}:{83+4*i}]" for i in range(3)] + ["a[240:243]"]
    SA = [64+12, 0, 0]
    a("v_mov_b32 v77, 0\nv_mov_b32 v78, 0\nv_mov_b32 v79, 0")
    for r in range(8):
        a(f"v_accvgpr_write_b32 a{244+r}, 0")
    a("s_waitcnt lgkmcnt(8)")
    a("v_mov_b32 v76, 0")
    a("s_nop 1")
    for i in range(4):
        a(f"v_mfma_f32_16x16x32_bf16 v[76:79], v[{44+4*i}:{47+4*i}], v[{24+4*i}:{27+4*i}], v[76:79]")
    a("s_waitcnt lgkmcnt(0)")
    for i in range(4):
        a(f"v_mfma_f32_16x16x32_bf16 a[244:247], {kxr[i]}, v[{24+4*i}:{27+4*i}], a[244:247]")
        a(f"v_mfma_f32_16x16x32_bf16 a[248:251], {kxr[4+i]}, v[{24+4*i}:{27+4*i}], a[248:251]")
    VBv = [44, 48, 52, 56]
    for j in range(3):
        a(f"ds_read_b128 v[{VBv[j]}:{VBv[j]+3}], v7 offset:{64*j}")
    a("s_nop 4")
    for r in range(8):
        a(f"v_accvgpr_read_b32 v{60+r}, a{244+r}")
    sc = [76, 77, 78, 79, 60, 61, 62, 63, 64, 65, 66, 67]
    prog = []
    P = prog.append
    P(f"v_mov_b32 v68, 0xff800000")
    for r in range(4):
        P(f"v_cndmask_b32 v{76+r}, v68, v{76+r}, s[24:25]")
    P(f"v_max_f32 v69, v{sc[0]}, v{sc[1]}")
    for i in range(2, 12, 2):
        P(f"v_max3_f32 v69, v69, v{sc[i]}, v{sc[i+1]}")
    P("v_mov_b32 v70, v69\ns_nop 1\nv_permlane16_swap_b32 v69, v70")
    P("v_max_f32 v69, v69, v70")
    P("v_mov_b32 v70, v69\ns_nop 1\nv_permlane32_swap_b32 v69, v70")
    P("v_max_f32 v69, v69, v70")
    P(f"v_mov_b32 v71, {hex(f32bits(SCALE_LOG2E))}")
    P("v_mul_f32 v69, v69, v71")
    for i in range(12):
        P(f"v_fma_f32 v{sc[i]}, v{sc[i]}, v71, -v69")
    for i in range(12):
        P(f"v_exp_f32 v{sc[i]}, v{sc[i]}")
    P(f"v_add_f32 v69, v{sc[0]}, v{sc[1]}")
    for i in range(2, 12):
        P(f"v_add_f32 v69, v69, v{sc[i]}")
    P("v_mov_b32 v70, v69\ns_nop 1\nv_permlane16_swap_b32 v69, v70")
    P("v_add_f32 v69, v69, v70")
    P("v_mov_b32 v70, v69\ns_nop 1\nv_permlane32_swap_b32 v69, v70")
    P("v_add_f32 v69, v69, v70")
    P("v_rcp_f32 v69, v69\ns_nop 0")
    for i in range(12):
        P(f"v_mul_f32 v{sc[i]}, v{sc[i]}, v69")
    P("v_cvt_pk_bf16_f32 v80, v76, v77\nv_cvt_pk_bf16_f32 v81, v78, v79")
    P("v_cvt_pk_bf16_f32 v82, v60, v61\nv_cvt_pk_bf16_f32 v83, v62, v63")
    P("v_cvt_pk_bf16_f32 v84, v64, v65\nv_cvt_pk_bf16_f32 v85, v66, v67")
    P("v_mov_b32 v86, 0\nv_mov_b32 v87, 0")
    per = (len(prog) + 19) // 20
    pi = 0
    for ks in range(20):
        if ks + 3 < 20:
            b = VBv[(ks + 3) % 4]
            a(f"ds_read_b128 v[{b}:{b+3}], v7 offset:{64*(ks+3)}")
            a("s_waitcnt lgkmcnt(3)")
        else:
            a(f"s_waitcnt lgkmcnt({19-ks})")
        b = VBv[ks % 4]
        a(f"v_mfma_f32_16x16x32_bf16 v[40:43], v[{b}:{b+3}], v[{96+4*ks}:{99+4*ks}], v[40:43]")
        for _ in range(per):
            if pi < len(prog):
                a(prog[pi]); pi += 1
    while pi < len(prog):
        a(prog[pi]); pi += 1
    a("s_nop 7")
    a("v_cvt_pk_bf16_f32 v88, v40, v41\nv_cvt_pk_bf16_f32 v89, v42, v43\nv_mov_b32 v90, v92\nv_mov_b32 v91, v93")
    a("v_mov_b32 v92, v94\nv_mov_b32 v93, v95")
    a("buffer_store_dwordx2 v[88:89], v23, s[8:11], s50 offen")
    a("v_mov_b32 v24, 0\nv_mov_b32 v25, 0\nv_mov_b32 v26, 0\nv_mov_b32 v27, 0")
    a("s_nop 1")
    a("v_mfma_f32_16x16x32_bf16 v[24:27], v[88:91], v[80:83], v[24:27]")
    a("v_mfma_f32_16x16x32_bf16 v[24:27], v[92:95], v[84:87], v[24:27]")
    a("s_nop 7\ns_nop 1")
    a("v_cvt_pk_bf16_f32 v28, v24, v25\nv_cvt_pk_bf16_f32 v29, v26, v27")
    a("v_min_u32 v28, -2, v28\nv_min_u32 v29, -2, v29")
    a("s_mov_b64 exec, s[20:21]\nbuffer_store_dwordx2 v[28:29], v11, s[8:11], s42 offen\ns_mov_b64 exec, -1")
    a(f"s_add_u32 s47, s47, {H*8192}\ns_add_u32 s48, s48, {H*8192}\ns_add_u32 s54, s17, 1")
    kx_prefetch()
    a("L_ch_opoll:")
    a("buffer_load_dwordx4 v[24:27], v12, s[8:11], s42 offen sc1\nbuffer_load_dwordx4 v[28:31], v12, s[8:11], s42 offen offset:1024 sc1")
    a("s_waitcnt vmcnt(0)")
    a("v_max_u32 v36, v24, v25\nv_max3_u32 v36, v36, v26, v27\nv_max3_u32 v36, v36, v28, v29\nv_max3_u32 v36, v36, v30, v31")
    a("v_cmp_eq_u32 vcc, -1, v36\ns_cbranch_vccnz L_ch_opoll")
    a(f"ds_write_b128 v12, v[24:27] offset:{L_OB}\nds_write_b128 v12, v[28:31] offset:{L_OB+1024}")
    a("s_waitcnt lgkmcnt(0)\ns_barrier")
    for i in range(8):
        a(f"v_mov_b32 v{24+i}, 0")
    a("s_lshl_b32 s18, s16, 11\nv_add_u32 v76, s18, v13")
    AB = [32, 36, 40, 44]; OBB = [48, 52, 56, 60]
    for k in range(4):
        a(f"ds_read_b128 v[{64+4*k}:{67+4*k}], v10 offset:{1024*k}")
        a(f"ds_read_b128 v[{80+4*k}:{83+4*k}], v76 offset:{512*k}" if k < 3 else f"ds_read_b128 a[240:243], v76 offset:{512*k}")
    for j in range(3):
        a(f"ds_read_b128 v[{AB[j]}:{AB[j]+3}], v9 offset:{1024*j}\nds_read_b128 v[{OBB[j]}:{OBB[j]+3}], v13 offset:{512*j}")
    a("s_waitcnt lgkmcnt(6)")
    for k in range(4):
        bop = f"v[{80+4*k}:{83+4*k}]" if k < 3 else "a[240:243]"
        a(f"v_mfma_f32_16x16x32_bf16 v[28:31], v[{64+4*k}:{67+4*k}], {bop}, v[28:31]")
    for ks in range(16):
        if ks + 3 < 16:
            j = (ks + 3) % 4
            a(f"ds_read_b128 v[{AB[j]}:{AB[j]+3}], v9 offset:{1024*(ks+3)}\nds_read_b128 v[{OBB[j]}:{OBB[j]+3}], v13 offset:{512*(ks+3)}")
            a("s_waitcnt lgkmcnt(6)")
        else:
            a(f"s_waitcnt lgkmcnt({2*(15-ks)})")
        j = ks % 4
        a(f"v_mfma_f32_16x16x32_bf16 v[24:27], v[{AB[j]}:{AB[j]+3}], v[{OBB[j]}:{OBB[j]+3}], v[24:27]")
    a("v_mov_b32 v33, s60")
    for i in range(4):
        a(f"v_and_or_b32 v{28+i}, v{28+i}, -2, v33")
    a("s_mov_b64 exec, s[20:21]")
    a("buffer_store_dwordx4 v[28:31], v15, s[8:11], s44 offen sc1\nbuffer_store_dwordx4 v[28:31], v15, s[8:11], s43 offen")
    a("s_mov_b64 exec, -1")
    a("s_nop 3")
    for i in range(4):
        a(f"v_and_or_b32 v{24+i}, v{24+i}, -2, v33")
    a("s_mov_b64 exec, s[20:21]")
    a("buffer_store_dwordx4 v[24:27], v14, s[8:11], s44 offen sc1\nbuffer_store_dwordx4 v[24:27], v14, s[8:11], s43 offen")
    a("s_mov_b64 exec, -1")
    def check(regs):
        a(f"v_xor_b32 v60, v{regs[0]}, v33")
        for r in regs[1:]:
            a(f"v_xor_b32 v61, v{r}, v33\nv_or_b32 v60, v60, v61")
        a("v_and_b32 v60, 1, v60\nv_cmp_ne_u32 vcc, 0, v60")
    def tree(b):
        for j in range(4):
            a(f"v_add_f32 v{b+j}, v{b+j}, v{b+j} row_ror:8")
        for j in range(4):
            a(f"v_mov_b32 v{64+j}, v{b+j}")
        a("s_nop 1")
        for j in range(4):
            a(f"v_permlane16_swap_b32 v{b+j}, v{64+j}")
        for j in range(4):
            a(f"v_add_f32 v{b+j}, v{b+j}, v{64+j}")
        for j in range(4):
            a(f"v_mov_b32 v{64+j}, v{b+j}")
        a("s_nop 1")
        for j in range(4):
            a(f"v_permlane32_swap_b32 v{b+j}, v{64+j}")
        for j in range(4):
            a(f"v_add_f32 v{b+j}, v{b+j}, v{64+j}")
        a(f"v_cvt_pk_bf16_f32 v{b}, v{b}, v{b+1}\nv_cvt_pk_bf16_f32 v{b+1}, v{b+2}, v{b+3}")
        a(f"v_min_u32 v{b}, -2, v{b}\nv_min_u32 v{b+1}, -2, v{b+1}")
    a("s_add_u32 s51, s41, 10240\ns_mov_b32 s41, s51")
    a("s_cmp_lg_u32 s16, 0\ns_cbranch_scc1 L_ch_rpollB")
    a("L_ch_rpollA:")
    a("buffer_load_dwordx4 v[36:39], v16, s[8:11], s46 offen sc1")
    for i in range(4):
        a(f"buffer_load_dwordx4 v[{40+4*i}:{43+4*i}], v17, s[8:11], s46 offen offset:{512*i} sc1")
    a("s_waitcnt vmcnt(0)")
    check(list(range(36, 56)))
    a("s_cbranch_vccnz L_ch_rpollA")
    for j in range(4):
        a(f"v_add_f32 v{40+j}, v{40+j}, v{44+j}\nv_add_f32 v{48+j}, v{48+j}, v{52+j}")
    for j in range(4):
        a(f"v_add_f32 v{40+j}, v{40+j}, v{48+j}")
    tree(40)
    a("s_mov_b64 exec, s[22:23]\nbuffer_store_dwordx2 v[40:41], v19, s[8:11], s51 offen\ns_mov_b64 exec, -1")
    a("s_branch L_ch_rdone")
    a("L_ch_rpollB:")
    a("buffer_load_dwordx4 v[36:39], v16, s[8:11], s46 offen sc1")
    a("s_waitcnt vmcnt(0)")
    check(list(range(36, 40)))
    a("s_cbranch_vccnz L_ch_rpollB")
    a("L_ch_rdone:")
    tree(36)
    a("s_mov_b64 exec, s[22:23]\nbuffer_store_dwordx2 v[36:37], v18, s[8:11], s51 offen\ns_mov_b64 exec, -1")
    a(f"s_add_u32 s42, s42, {8*8192}\ns_add_u32 s49, s49, {H*4096}\ns_add_u32 s50, s50, {H*4096}")
    a("s_add_u32 s17, s17, 1\ns_branch L_ch_step")
    a("L_ch_last:")
    VBv = [44+16, 48+16, 52+16, 56+16]
    for j in range(3):
        a(f"ds_read_b128 v[{VBv[j]}:{VBv[j]+3}], v7 offset:{64*j}")
    for ks in range(20):
        if ks + 3 < 20:
            b = VBv[(ks + 3) % 4]
            a(f"ds_read_b128 v[{b}:{b+3}], v7 offset:{64*(ks+3)}")
            a("s_waitcnt lgkmcnt(3)")
        else:
            a(f"s_waitcnt lgkmcnt({19-ks})")
        b = VBv[ks % 4]
        a(f"v_mfma_f32_16x16x32_bf16 v[40:43], v[{b}:{b+3}], v[{96+4*ks}:{99+4*ks}], v[40:43]")
    a("s_nop 7\ns_nop 1")
    a("v_cvt_pk_bf16_f32 v88, v40, v41\nv_cvt_pk_bf16_f32 v89, v42, v43")
    a("buffer_store_dwordx2 v[88:89], v23, s[8:11], s50 offen")
    a("L_ch_done:\ns_endpgm")
    return name, GRID, 256, LDS, kd(name, 512, 96, 256)
```

```python
from common import *
GRID = 256
LDS = 4 * 20 * 1024
ST = 32
ACC = 140
RA = 220
T = 8

def gen(a):
    name = "final_kernel"
    a.kernel_begin(name)
    a(f"s_cmp_ge_u32 s2, {GRID}\ns_cbranch_scc1 L_fn_done")
    a(f"s_load_dwordx2 s[4:5], s[0:1], {KA['ws']}\ns_load_dwordx2 s[6:7], s[0:1], {KA['out']}")
    a("s_waitcnt lgkmcnt(0)")
    a.srd(8, 4, WS_BYTES)
    a.srd(12, 6, S * DM * 2)
    a("v_lshrrev_b32 v1, 6, v0\ns_nop 0\nv_readfirstlane_b32 s16, v1\nv_and_b32 v0, 63, v0")
    a("s_and_b32 s17, s2, 7\ns_lshr_b32 s18, s2, 3\ns_and_b32 s18, s18, 3\ns_lshl_b32 s18, s18, 3\ns_add_u32 s17, s17, s18")
    a("s_lshr_b32 s18, s2, 5")
    a("v_and_b32 v1, 15, v0\nv_lshrrev_b32 v2, 4, v0\nv_lshlrev_b32 v3, 4, v0")
    a(f"s_lshl_b32 s19, s17, 6\ns_lshl_b32 s20, s16, 4\ns_add_u32 s19, s19, s20\nv_add_u32 v4, s19, v1")
    a(f"v_lshlrev_b32 v5, 2, v4\nbuffer_load_dword v7, v5, s[8:11], {WS['GATE']} offen" if False else
      f"v_lshlrev_b32 v5, 2, v4\ns_mov_b32 s21, {WS['GATE']}\nbuffer_load_dword v7, v5, s[8:11], s21 offen")
    a("v_mul_u32_u24 v4, 1280, v4\nv_lshlrev_b32 v5, 3, v2\nv_add_u32 v4, v4, v5\ns_mul_i32 s22, s18, 160")
    a("s_mul_i32 s23, s16, 20480\nv_add_u32 v5, s23, v3")
    a("s_lshl_b32 s23, s16, 10\nv_add_u32 v6, s23, v3\nv_add_u32 v9, 40960, v6")
    def load(st):
        b = ST + 36 * st
        for i in range(9):
            a(f"s_add_u32 s47, s{60+i}, s44")
            a(f"buffer_load_dwordx4 v[{b+4*i}:{b+4*i+3}], v3, s[8:11], s47 offen")
        a("s_add_u32 s45, s45, 1\ns_cmp_lt_u32 s45, s50\ns_cselect_b32 s47, 4096, 0\ns_add_u32 s44, s44, s47")
    def mfma(st):
        b = ST + 36 * st
        for i in range(5):
            for j in range(4):
                d = ACC + 4 * (i*4 + j)
                a(f"v_mfma_f32_16x16x32_bf16 v[{d}:{d+3}], v[{b+4*i}:{b+4*i+3}], v[{b+20+4*j}:{b+23+4*j}], v[{d}:{d+3}]")
    def phase(tag):
        a("s_lshl_b32 s44, s16, 10\ns_mov_b32 s45, 0\ns_mov_b32 s46, 0")
        load(0); load(1)
        for r in range(80):
            a(f"v_mov_b32 v{ACC+r}, 0")
        a(f"L_fn_loop{tag}:")
        for st in range(3):
            load((st + 2) % 3)
            a("s_waitcnt vmcnt(18)")
            mfma(st)
            a(f"s_add_u32 s46, s46, 1\ns_cmp_ge_u32 s46, s50\ns_cbranch_scc1 L_fn_end{tag}")
        a(f"s_branch L_fn_loop{tag}")
        a(f"L_fn_end{tag}:")
        a("s_nop 7\ns_nop 3")
        for t in range(20):
            a(f"ds_write_b128 v5, v[{ACC+4*t}:{ACC+4*t+3}] offset:{1024*t}")
        a("s_waitcnt vmcnt(0) lgkmcnt(0)\ns_barrier")
        for i in range(5):
            for p in range(4):
                a(f"ds_read_b128 v[{ST+16*i+4*p}:{ST+16*i+4*p+3}], v{6 if p < 2 else 9} offset:{20480*(p%2) + 4096*i}")
        a("s_waitcnt lgkmcnt(0)\ns_barrier")
        for i in range(5):
            b = ST + 16 * i
            for r in range(4):
                a(f"v_add_f32 v{b+r}, v{b+r}, v{b+4+r}\nv_add_f32 v{b+8+r}, v{b+8+r}, v{b+12+r}")
            for r in range(4):
                a(f"v_add_f32 v{b+r}, v{b+r}, v{b+8+r}")
            a(f"v_cvt_pk_bf16_f32 v{b+4}, v{b}, v{b+1}\nv_cvt_pk_bf16_f32 v{b+5}, v{b+2}, v{b+3}")
            a(f"v_lshlrev_b32 v{b}, 16, v{b+4}\nv_and_b32 v{b+1}, 0xffff0000, v{b+4}\nv_lshlrev_b32 v{b+2}, 16, v{b+5}\nv_and_b32 v{b+3}, 0xffff0000, v{b+5}")
    a(f"s_mul_i32 s24, s18, {5*128*1024}\ns_add_u32 s24, s24, {WS['WOF']}")
    for i in range(5):
        a(f"s_add_u32 s{60+i}, s24, {i*128*1024}")
    a(f"s_lshl_b32 s24, s17, 19\ns_add_u32 s24, s24, {WS['OX']}")
    for j in range(4):
        a(f"s_add_u32 s{65+j}, s24, {j*128*1024}")
    a("s_mov_b32 s50, 32")
    phase("a")
    for i in range(5):
        for r in range(4):
            a(f"v_mul_f32 v{RA+4*i+r}, v7, v{ST+16*i+r}")
        a(f"v_cvt_pk_bf16_f32 v{RA+4*i}, v{RA+4*i}, v{RA+4*i+1}\nv_cvt_pk_bf16_f32 v{RA+4*i+1}, v{RA+4*i+2}, v{RA+4*i+3}")
    a(f"s_mul_i32 s24, s18, {5*54*1024}\ns_add_u32 s24, s24, {WS['WDF']}")
    for i in range(5):
        a(f"s_add_u32 s{60+i}, s24, {i*54*1024}")
    a(f"s_mul_i32 s24, s17, {4*54*1024}\ns_add_u32 s24, s24, {WS['HF']}")
    for j in range(4):
        a(f"s_add_u32 s{65+j}, s24, {j*54*1024}")
    a("s_cmp_lt_u32 s16, 2\ns_cselect_b32 s50, 14, 13")
    phase("b")
    a(f"v_sub_f32 v{T}, 1.0, v7\nv_cvt_pk_bf16_f32 v{T}, v{T}, v{T}\nv_lshlrev_b32 v{T}, 16, v{T}")
    for i in range(5):
        b = ST + 16 * i
        for r in range(4):
            a(f"v_mul_f32 v{b+r}, v{T}, v{b+r}")
        a(f"v_cvt_pk_bf16_f32 v{b+4}, v{b}, v{b+1}\nv_cvt_pk_bf16_f32 v{b+5}, v{b+2}, v{b+3}")
        a(f"v_lshlrev_b32 v{b}, 16, v{b+4}\nv_and_b32 v{b+1}, 0xffff0000, v{b+4}\nv_lshlrev_b32 v{b+2}, 16, v{b+5}\nv_and_b32 v{b+3}, 0xffff0000, v{b+5}")
        a(f"v_lshlrev_b32 v{b+8}, 16, v{RA+4*i}\nv_and_b32 v{b+9}, 0xffff0000, v{RA+4*i}\nv_lshlrev_b32 v{b+10}, 16, v{RA+4*i+1}\nv_and_b32 v{b+11}, 0xffff0000, v{RA+4*i+1}")
        for r in range(4):
            a(f"v_add_f32 v{b+r}, v{b+r}, v{b+8+r}")
        a(f"v_cvt_pk_bf16_f32 v{b+4}, v{b}, v{b+1}\nv_cvt_pk_bf16_f32 v{b+5}, v{b+2}, v{b+3}")
        a(f"buffer_store_dwordx2 v[{b+4}:{b+5}], v4, s[12:15], s22 offen offset:{32*i}")
    a("L_fn_done:\ns_endpgm")
    return name, GRID, 256, LDS, kd(name, 256, 96, 256)
```

```python
from common import *
GRID = 256
UB = 40960
LDS = 3 * UB
ACC = 64
AB = 96
GH = 128
TMP = 144

def f32bits(x):
    import struct
    return struct.unpack("<I", struct.pack("<f", x))[0]

def xreg(tt, ks):
    i = tt * 20 + ks
    return f"a[{4*i}:{4*i+3}]" if i < 64 else f"v[{192+4*(i-64)}:{195+4*(i-64)}]"

def gen(a):
    name = "gemm1_kernel"
    a.kernel_begin(name)
    a(f"s_cmp_ge_u32 s2, {GRID}\ns_cbranch_scc1 L_g1_done")
    a(f"s_load_dwordx2 s[4:5], s[0:1], {KA['ws']}\ns_load_dwordx2 s[6:7], s[0:1], {KA['x']}")
    a("s_waitcnt lgkmcnt(0)")
    a.srd(8, 4, WS_BYTES)
    a.srd(12, 6, S * DM * 2)
    a("v_lshrrev_b32 v1, 6, v0\ns_nop 0\nv_readfirstlane_b32 s16, v1\nv_and_b32 v0, 63, v0")
    a("s_and_b32 s17, s2, 7\ns_lshl_b32 s17, s17, 2\ns_lshr_b32 s18, s2, 3\ns_and_b32 s18, s18, 3\ns_add_u32 s17, s17, s18")
    a("s_lshr_b32 s18, s2, 5")
    a("s_lshr_b32 s19, s17, 3\ns_and_b32 s20, s17, 7")
    a("v_and_b32 v1, 15, v0\nv_lshrrev_b32 v2, 4, v0\nv_lshlrev_b32 v8, 4, v0")
    a("s_lshl_b32 s21, s18, 2\ns_add_u32 s21, s21, s16")
    a(f"s_mul_i32 s22, s21, {64*1280}")
    a("v_mul_u32_u24 v3, 1280, v1\nv_lshlrev_b32 v4, 4, v2\nv_add_u32 v3, v3, v4")
    for tt in range(4):
        a(f"s_add_u32 s23, s22, {tt*16*1280}")
        for ks in range(20):
            a(f"buffer_load_dwordx4 {xreg(tt, ks)}, v3, s[12:15], s23 offen offset:{64*ks}")
    a("s_cmp_eq_u32 s19, 3\ns_cbranch_scc1 L_g1_ffnsetup")
    a(f"s_mul_i32 s24, s19, {WS['WKF']-WS['WQF']}\ns_add_u32 s24, s24, {WS['WQF']}")
    a(f"s_mul_i32 s26, s20, {16*UB}\ns_add_u32 s24, s24, s26\ns_add_u32 s25, s24, {UB}\ns_mov_b32 s27, {2*UB}\ns_mov_b32 s28, 16")
    a("s_lshl_b32 s29, s20, 4")
    a("s_branch L_g1_setup2")
    a("L_g1_ffnsetup:")
    a("s_mul_i32 s29, s20, 7\ns_mov_b32 s28, 14\ns_cmp_lt_u32 s20, 6\ns_cbranch_scc1 L_g1_f1")
    a("s_mov_b32 s28, 12\ns_cmp_eq_u32 s20, 6\ns_cselect_b32 s29, 42, 48")
    a("L_g1_f1:")
    a(f"s_mul_i32 s26, s29, {UB}\ns_add_u32 s24, s26, {WS['WGF']}\ns_add_u32 s25, s26, {WS['WUF']}\ns_mov_b32 s27, {UB}")
    a("L_g1_setup2:")
    assert WS['WVF'] - WS['WKF'] == WS['WKF'] - WS['WQF']
    a("s_mul_i32 s30, s16, 10240\nv_add_u32 v9, s30, v8")
    def issue(sbuf):
        a(f"s_add_u32 s31, s{sbuf}, s30\ns_mov_b32 m0, s31\ns_nop 0")
        for f in range(10):
            if f == 4 or f == 8:
                a(f"s_add_u32 s31, s31, 4096\ns_mov_b32 m0, s31\ns_add_u32 s33, s24, {f*1024}\ns_nop 0")
            src = "s24" if f < 4 else "s33"
            a(f"buffer_load_dwordx4 v9, s[8:11], {src} offen offset:{(f%4)*1024} lds")
        a("s_add_u32 s33, s24, s27\ns_mov_b32 s24, s25\ns_mov_b32 s25, s33")
    a(f"s_mov_b32 s34, 0\ns_mov_b32 s35, {UB}\ns_mov_b32 s36, {2*UB}")
    issue(34); issue(35); issue(36)
    a("s_mov_b32 s37, 0")
    a(f"s_mul_i32 s38, s21, {2*H*8192}")
    a(f"s_mul_i32 s39, s19, {WS['KX']-WS['QX']}\ns_add_u32 s39, s39, {WS['QX']}\ns_add_u32 s38, s38, s39")
    assert WS['VX'] - WS['KX'] == WS['KX'] - WS['QX']
    a(f"s_mul_i32 s40, s21, {4*54*1024}\ns_add_u32 s40, s40, {WS['HF']}")
    a("s_waitcnt vmcnt(20)\ns_barrier")
    a("L_g1_unit:")
    a("v_add_u32 v10, s34, v8")
    a("s_cmp_eq_u32 s19, 2\ns_cbranch_scc1 L_g1_cv")
    def compute(swapped):
        for j in range(3):
            a(f"ds_read_b128 v[{AB+8*j}:{AB+8*j+3}], v10 offset:{1024*j}\nds_read_b128 v[{AB+8*j+4}:{AB+8*j+7}], v10 offset:{20480+1024*j}")
        for ks in range(20):
            if ks + 3 < 20:
                j = (ks + 3) % 4
                a(f"ds_read_b128 v[{AB+8*j}:{AB+8*j+3}], v10 offset:{1024*(ks+3)}\nds_read_b128 v[{AB+8*j+4}:{AB+8*j+7}], v10 offset:{20480+1024*(ks+3)}")
                a("s_waitcnt lgkmcnt(6)")
            else:
                a(f"s_waitcnt lgkmcnt({2*(19-ks)})")
            j = ks % 4
            for t in range(2):
                for tt in range(4):
                    d = ACC + (t*4+tt)*4
                    w = f"v[{AB+8*j+4*t}:{AB+8*j+4*t+3}]"
                    c = "0" if ks == 0 else f"v[{d}:{d+3}]"
                    if swapped:
                        a(f"v_mfma_f32_16x16x32_bf16 v[{d}:{d+3}], {xreg(tt, ks)}, {w}, {c}")
                    else:
                        a(f"v_mfma_f32_16x16x32_bf16 v[{d}:{d+3}], {w}, {xreg(tt, ks)}, {c}")
    compute(False)
    a("s_branch L_g1_cd")
    a("L_g1_cv:")
    compute(True)
    a("L_g1_cd:")
    a("s_add_u32 s41, s37, 2\ns_cmp_lt_u32 s41, s28\ns_cbranch_scc1 L_g1_w10\ns_waitcnt vmcnt(0)\ns_branch L_g1_w\nL_g1_w10:\ns_waitcnt vmcnt(10)\nL_g1_w:")
    a("s_nop 7")
    a("s_cmp_eq_u32 s19, 3\ns_cbranch_scc1 L_g1_effn")
    a("s_cmp_eq_u32 s19, 2\ns_cbranch_scc1 L_g1_ev")
    a("s_add_u32 s41, s29, s37\ns_lshr_b32 s42, s41, 2\ns_lshl_b32 s42, s42, 13\ns_and_b32 s41, s41, 3\ns_lshl_b32 s41, s41, 10\ns_add_u32 s41, s41, s42\ns_add_u32 s41, s41, s38")
    for tt in range(4):
        d0 = ACC + tt*4; d1 = ACC + (4+tt)*4; o = TMP + 4*tt
        a(f"v_cvt_pk_bf16_f32 v{o}, v{d0}, v{d0+1}\nv_cvt_pk_bf16_f32 v{o+1}, v{d0+2}, v{d0+3}")
        a(f"v_cvt_pk_bf16_f32 v{o+2}, v{d1}, v{d1+1}\nv_cvt_pk_bf16_f32 v{o+3}, v{d1+2}, v{d1+3}")
        a(f"s_add_u32 s42, s41, {(tt>>1)*H*8192 + (tt&1)*4096}")
        a(f"buffer_store_dwordx4 v[{o}:{o+3}], v8, s[8:11], s42 offen")
    a("s_branch L_g1_ed")
    a("L_g1_ev:")
    a("s_add_u32 s41, s29, s37\ns_lshl_b32 s41, s41, 11\ns_add_u32 s41, s41, s38")
    for t in range(2):
        for sg in range(2):
            d0 = ACC + (t*4+2*sg)*4; d1 = d0 + 4; o = TMP + 4*(t*2+sg)
            a(f"v_cvt_pk_bf16_f32 v{o}, v{d0}, v{d0+1}\nv_cvt_pk_bf16_f32 v{o+1}, v{d0+2}, v{d0+3}")
            a(f"v_cvt_pk_bf16_f32 v{o+2}, v{d1}, v{d1+1}\nv_cvt_pk_bf16_f32 v{o+3}, v{d1+2}, v{d1+3}")
            a(f"s_add_u32 s42, s41, {sg*H*8192}")
            a(f"buffer_store_dwordx4 v[{o}:{o+3}], v8, s[8:11], s42 offen offset:{t*1024}")
    a("s_branch L_g1_ed")
    a("L_g1_effn:")
    a("s_and_b32 s41, s37, 1\ns_cmp_eq_u32 s41, 1\ns_cbranch_scc1 L_g1_eup")
    for i in range(8):
        d = ACC + 4*i
        a(f"v_cvt_pk_bf16_f32 v{GH+2*i}, v{d}, v{d+1}\nv_cvt_pk_bf16_f32 v{GH+2*i+1}, v{d+2}, v{d+3}")
    a("s_branch L_g1_ed")
    a("L_g1_eup:")
    C1 = -2.0 * 0.7978845608028654 * 1.4426950408889634
    C2 = C1 * 0.044715
    a(f"v_mov_b32 v20, {hex(f32bits(C1))}\nv_mov_b32 v21, {hex(f32bits(C2))}\nv_mov_b32 v22, 0xffff0000")
    a("s_lshr_b32 s41, s37, 1\ns_add_u32 s41, s41, s29\ns_lshl_b32 s41, s41, 10\ns_add_u32 s41, s41, s40")
    for i in range(8):
        d = ACC + 4*i
        T = TMP + 16
        a(f"v_cvt_pk_bf16_f32 v{T}, v{d}, v{d+1}\nv_cvt_pk_bf16_f32 v{T+1}, v{d+2}, v{d+3}")
        for r in range(4):
            src_g = GH + 2*i + (r >> 1); src_u = T + (r >> 1)
            g = T + 4 + r; u = T + 8 + r; z = T + 12 + r
            if r & 1:
                a(f"v_and_b32 v{g}, v22, v{src_g}\nv_and_b32 v{u}, v22, v{src_u}")
            else:
                a(f"v_lshlrev_b32 v{g}, 16, v{src_g}\nv_lshlrev_b32 v{u}, 16, v{src_u}")
        for r in range(4):
            g = T + 4 + r; z = T + 12 + r
            a(f"v_mul_f32 v{z}, v{g}, v{g}\nv_fma_f32 v{z}, v{z}, v21, v20\nv_mul_f32 v{z}, v{z}, v{g}")
        for r in range(4):
            z = T + 12 + r
            a(f"v_exp_f32 v{z}, v{z}")
        for r in range(4):
            z = T + 12 + r
            a(f"v_add_f32 v{z}, 1.0, v{z}")
        for r in range(4):
            z = T + 12 + r
            a(f"v_rcp_f32 v{z}, v{z}")
        a("s_nop 0")
        for r in range(4):
            g = T + 4 + r; z = T + 12 + r
            a(f"v_mul_f32 v{z}, v{z}, v{g}")
        a(f"v_cvt_pk_bf16_f32 v{T+4}, v{T+12}, v{T+13}\nv_cvt_pk_bf16_f32 v{T+5}, v{T+14}, v{T+15}")
        a(f"v_lshlrev_b32 v{T+12}, 16, v{T+4}\nv_and_b32 v{T+13}, v22, v{T+4}\nv_lshlrev_b32 v{T+14}, 16, v{T+5}\nv_and_b32 v{T+15}, v22, v{T+5}")
        for r in range(4):
            a(f"v_mul_f32 v{T+12+r}, v{T+12+r}, v{T+8+r}")
        t, tt = divmod(i, 4)
        o = TMP + 4*tt + 2*t
        a(f"v_cvt_pk_bf16_f32 v{o}, v{T+12}, v{T+13}\nv_cvt_pk_bf16_f32 v{o+1}, v{T+14}, v{T+15}")
    for tt in range(4):
        a(f"s_add_u32 s42, s41, {tt*54*1024}")
        a(f"buffer_store_dwordx4 v[{TMP+4*tt}:{TMP+4*tt+3}], v8, s[8:11], s42 offen")
    a("L_g1_ed:")
    a("s_barrier")
    a("s_add_u32 s41, s37, 3\ns_cmp_ge_u32 s41, s28\ns_cbranch_scc1 L_g1_noissue")
    issue(34)
    a("L_g1_noissue:")
    a("s_mov_b32 s41, s34\ns_mov_b32 s34, s35\ns_mov_b32 s35, s36\ns_mov_b32 s36, s41")
    a("s_add_u32 s37, s37, 1\ns_cmp_lt_u32 s37, s28\ns_cbranch_scc1 L_g1_unit")
    a("L_g1_done:\ns_endpgm")
    return name, GRID, 256, LDS, kd(name, 512, 96, 256)
```

```python
from common import *
MATS = [
    ("Wq", KA["Wq"], 640, 4096, "WQF", 0),
    ("Wk", KA["Wk"], 640, 4096, "WKF", 0),
    ("Wv", KA["Wv"], 640, 4096, "WVF", 0),
    ("Wo", KA["Wo"], 4096, 640, "WOF", 1),
    ("wg", KA["wg"], 640, 1728, "WGF", 0),
    ("wu", KA["wu"], 640, 1728, "WUF", 0),
    ("wd", KA["wd"], 1728, 640, "WDF", 1),
]
NBLK = [(K // 64) * (N // 64) for _, _, K, N, _, _ in MATS]
NPREP = sum(NBLK)
NINIT = (COMM1 - COMM0 + 16383) // 16384
NGATE = S // 16
GRID = NPREP + NINIT + NGATE
LDS = 64 * 144

def gen(a):
    name = "prep_kernel"
    a.kernel_begin(name)
    a(f"s_cmp_ge_u32 s2, {GRID}\ns_cbranch_scc1 L_prep_done")
    a(f"s_load_dwordx2 s[4:5], s[0:1], {KA['ws']}")
    a(f"s_cmp_ge_u32 s2, {NPREP+NINIT}\ns_cbranch_scc1 L_prep_gate")
    a(f"s_cmp_ge_u32 s2, {NPREP}\ns_cbranch_scc1 L_prep_init")
    base = 0
    for i, (nm, ka, K, N, dest, perm) in enumerate(MATS):
        nxt = f"L_prep_m{i+1}"
        if i < len(MATS) - 1:
            a(f"s_cmp_ge_u32 s2, {base + NBLK[i]}\ns_cbranch_scc1 {nxt}")
        a(f"s_load_dwordx2 s[6:7], s[0:1], {ka}")
        a(f"s_sub_u32 s16, s2, {base}")
        a(f"s_mov_b32 s17, {N*2}\ns_mov_b32 s18, {N//64}\ns_mov_b32 s19, {K//32}\ns_mov_b32 s20, {WS[dest]}\ns_mov_b32 s21, {perm}")
        a(f"s_mov_b32 s22, {K*N*2}")
        a(f"s_mov_b32 s23, {(1<<32)//(N//64) + 1}")
        a("s_branch L_prep_go")
        a(f"{nxt}:")
        base += NBLK[i]
    a("L_prep_go:")
    a("s_waitcnt lgkmcnt(0)")
    a("s_mov_b32 s8, s6\ns_mov_b32 s9, s7\ns_mov_b32 s10, s22\ns_mov_b32 s11, 0x00020000")
    a.srd(12, 4, WS_BYTES)
    a("s_mul_hi_u32 s24, s16, s23")
    a("s_mul_i32 s25, s24, s18\ns_sub_u32 s25, s16, s25")
    a("v_lshrrev_b32 v1, 3, v0\nv_and_b32 v2, 7, v0")
    a("s_lshl_b32 s26, s24, 6\nv_add_u32 v3, s26, v1\nv_mul_lo_u32 v3, v3, s17")
    a("s_lshl_b32 s26, s25, 7\nv_lshlrev_b32 v4, 4, v2\nv_add3_u32 v3, v3, v4, s26")
    a("s_lshl_b32 s27, s17, 5")
    a("buffer_load_dwordx4 v[8:11], v3, s[8:11], 0 offen\nbuffer_load_dwordx4 v[12:15], v3, s[8:11], s27 offen")
    a("v_mul_u32_u24 v5, 144, v1\nv_add_u32 v5, v5, v4")
    a("s_waitcnt vmcnt(0)")
    a(f"ds_write_b128 v5, v[8:11]\nds_write_b128 v5, v[12:15] offset:{32*144}")
    a("s_waitcnt lgkmcnt(0)\ns_barrier")
    a("v_lshrrev_b32 v1, 6, v0\nv_and_b32 v2, 63, v0\nv_lshrrev_b32 v6, 4, v2\nv_and_b32 v7, 15, v2")
    a("v_lshrrev_b32 v8, 2, v7\nv_and_b32 v9, 3, v7")
    a("s_cmp_eq_u32 s21, 0\ns_cselect_b32 s28, 3, 2\ns_cselect_b32 s29, 4, 16")
    a("v_lshlrev_b32 v10, s28, v6\nv_add_u32 v10, v10, v8\nv_mul_u32_u24 v10, 144, v10")
    a("v_lshlrev_b32 v11, 5, v1\nv_lshlrev_b32 v12, 3, v9\nv_add3_u32 v10, v10, v11, v12")
    a("s_mul_i32 s29, s29, 144\nv_add_u32 v11, s29, v10")
    a(f"ds_read_b64_tr_b16 v[16:17], v10\nds_read_b64_tr_b16 v[18:19], v11")
    a(f"ds_read_b64_tr_b16 v[20:21], v10 offset:{32*144}\nds_read_b64_tr_b16 v[22:23], v11 offset:{32*144}")
    a("s_lshl_b32 s26, s25, 2\nv_add_u32 v3, s26, v1\nv_mul_lo_u32 v3, v3, s19")
    a("s_lshl_b32 s26, s24, 1\nv_add_u32 v3, s26, v3\nv_lshlrev_b32 v3, 10, v3\nv_lshlrev_b32 v4, 4, v2\nv_add_u32 v3, v3, v4")
    a("s_waitcnt lgkmcnt(0)")
    a("buffer_store_dwordx4 v[16:19], v3, s[12:15], s20 offen\nbuffer_store_dwordx4 v[20:23], v3, s[12:15], s20 offen offset:1024")
    a("s_branch L_prep_done")
    a("L_prep_init:")
    a("s_waitcnt lgkmcnt(0)")
    a.srd(12, 4, COMM1)
    a(f"s_sub_u32 s16, s2, {NPREP}\ns_lshl_b32 s16, s16, 14\ns_add_u32 s16, s16, {COMM0}")
    a("v_lshlrev_b32 v1, 4, v0\nv_mov_b32 v4, -1\nv_mov_b32 v5, -1\nv_mov_b32 v6, -1\nv_mov_b32 v7, -1")
    for i in range(4):
        a(f"buffer_store_dwordx4 v[4:7], v1, s[12:15], s16 offen offset:{4096*i}" if i == 0 else
          f"v_add_u32 v2, {4096*i}, v1\nbuffer_store_dwordx4 v[4:7], v2, s[12:15], s16 offen")
    a("s_branch L_prep_done")
    a("L_prep_gate:")
    a(f"s_load_dwordx2 s[6:7], s[0:1], {KA['x']}\ns_load_dwordx2 s[16:17], s[0:1], {KA['gw']}")
    a("s_waitcnt lgkmcnt(0)")
    a.srd(8, 6, S * DM * 2)
    a.srd(12, 4, WS_BYTES)
    a.srd(20, 16, DM * 2)
    a("v_lshrrev_b32 v1, 6, v0\nv_and_b32 v2, 63, v0\ns_nop 0\nv_readfirstlane_b32 s24, v1\nv_mul_u32_u24 v3, 20, v2")
    a(f"s_sub_u32 s25, s2, {NPREP+NINIT}\ns_lshl_b32 s25, s25, 4\ns_lshl_b32 s24, s24, 2\ns_add_u32 s25, s25, s24")
    a("s_mul_i32 s26, s25, 1280")
    a("buffer_load_dwordx4 v[4:7], v3, s[20:23], 0 offen\nbuffer_load_dword v8, v3, s[20:23], 0 offen offset:16")
    for r in range(4):
        a(f"s_add_u32 s27, s26, {1280*r}")
        a(f"buffer_load_dwordx4 v[{48+6*r}:{51+6*r}], v3, s[8:11], s27 offen\nbuffer_load_dword v{52+6*r}, v3, s[8:11], s27 offen offset:16")
    a("s_waitcnt vmcnt(0)")
    a("v_mov_b32 v9, 0xffff0000")
    for r in range(4):
        acc = 40 + r
        a(f"v_mov_b32 v{acc}, 0")
        for d in range(5):
            x = 48 + 6*r + d; w = 4 + d
            a(f"v_lshlrev_b32 v32, 16, v{x}\nv_lshlrev_b32 v33, 16, v{w}\nv_and_b32 v34, v9, v{x}\nv_and_b32 v35, v9, v{w}")
            a("v_mul_f32 v32, v32, v33\nv_mul_f32 v34, v34, v35\nv_cvt_pk_bf16_f32 v32, v32, v34")
            a(f"v_lshlrev_b32 v33, 16, v32\nv_and_b32 v34, v9, v32\nv_add_f32 v{acc}, v{acc}, v33\nv_add_f32 v{acc}, v{acc}, v34")
    for sh in (1, 2, 4, 8):
        a("s_nop 1")
        for r in range(4):
            a(f"v_add_f32 v{44+r}, v{40+r}, v{40+r} row_ror:{sh}")
        for r in range(4):
            a(f"v_mov_b32 v{40+r}, v{44+r}")
    a("s_nop 1")
    for r in range(4):
        a(f"v_permlane16_swap_b32 v{40+r}, v{44+r}")
    for r in range(4):
        a(f"v_add_f32 v{40+r}, v{40+r}, v{44+r}")
    for r in range(4):
        a(f"v_mov_b32 v{44+r}, v{40+r}")
    a("s_nop 1")
    for r in range(4):
        a(f"v_permlane32_swap_b32 v{40+r}, v{44+r}")
    for r in range(4):
        a(f"v_add_f32 v{40+r}, v{40+r}, v{44+r}")
    for r in range(4):
        a(f"v_cvt_pk_bf16_f32 v{40+r}, v{40+r}, v{40+r}\nv_lshlrev_b32 v{40+r}, 16, v{40+r}")
        a(f"v_mul_f32 v{40+r}, 0xbfb8aa3b, v{40+r}")
    for r in range(4):
        a(f"v_exp_f32 v{40+r}, v{40+r}")
    a("s_nop 0")
    for r in range(4):
        a(f"v_add_f32 v{40+r}, 1.0, v{40+r}")
    for r in range(4):
        a(f"v_rcp_f32 v{40+r}, v{40+r}")
    a("s_nop 0")
    for r in range(4):
        a(f"v_cvt_pk_bf16_f32 v{40+r}, v{40+r}, v{40+r}\nv_lshlrev_b32 v{40+r}, 16, v{40+r}")
    a(f"s_lshl_b32 s25, s25, 2\ns_add_u32 s25, s25, {WS['GATE']}\nv_mov_b32 v3, 0")
    a("s_mov_b64 exec, 1\nbuffer_store_dwordx4 v[40:43], v3, s[12:15], s25 offen")
    a("L_prep_done:\ns_endpgm")
    return name, GRID, 256, LDS, kd(name, 72, 40, 72)
```

```python
import sys
from common import *
import k_prep, k_gemm1, k_chain, k_attn, k_final
mods = [k_prep, k_gemm1, k_chain, k_attn, k_final]
only = sys.argv[1:]
a = Asm()
infos = []
for m in mods:
    infos.append(m.gen(a))
hdr = open("cdna_kernels/" + KN + ".s.ref").read().split("; Override launch")[0]
out = hdr
for name, grid, block, lds, _ in infos:
    out += f"; @launch kernel={name} grid=({grid},1,1) block=({block},1,1) lds={lds}\n"
out += '.amdgcn_target "amdgcn-amd-amdhsa--gfx950"\n.text\n' + a.text()
out += '.section .rodata,"a"\n' + "\n".join(i[4] for i in infos) + "\n"
open("out.s", "w").write(out)
print("bytes", len(out))
```

```python
from common import *
import k_gemm1
GRID = 256
MSTR = 1344
L_MEM = 0
L_SP = L_MEM + 8 * MSTR
L_WP = L_SP + 12288
L_KV = L_WP + 20480
L_MISC = L_KV + 24576
L_WO = L_MISC + 512
LDS = L_WO + 81920
SCALE_LOG2E = (128 ** -0.5) * 1.4426950408889634

def f32bits(x):
    import struct
    return struct.unpack("<I", struct.pack("<f", x))[0]

PROF = False
RSL = 4
NEED = 32
SLEEP = 0
def gen(a):
    name = "chain_kernel"
    def stamp(i):
        if PROF:
            a(f"s_memtime s[{64+2*i}:{65+2*i}]")
    a.kernel_begin(name)
    a(f"s_cmp_ge_u32 s2, {GRID}\ns_cbranch_scc1 L_ch_done")
    a(f"s_load_dwordx2 s[4:5], s[0:1], {KA['ws']}\ns_load_dwordx2 s[6:7], s[0:1], {KA['dbg']}\ns_load_dwordx2 s[52:53], s[0:1], {KA['mem0']}")
    a("s_waitcnt lgkmcnt(0)")
    a.srd(8, 4, WS_BYTES)
    a.srd(12, 6, 256)
    a.srd(56, 52, 10240)
    a("v_lshrrev_b32 v1, 6, v0\ns_nop 0\nv_readfirstlane_b32 s16, v1\nv_and_b32 v0, 63, v0")
    a("s_getreg_b32 s34, hwreg(HW_REG_XCC_ID)\ns_and_b32 s34, s34, 15")
    a("s_cmp_lg_u32 s16, 0\ns_cbranch_scc1 L_ch_tk")
    a("s_mov_b64 exec, 1\nv_mov_b32 v3, s34\nv_lshlrev_b32 v3, 2, v3\nv_mov_b32 v4, 1\nv_mov_b32 v5, 1")
    a("buffer_atomic_add v4, v3, s[12:15], 0 offen sc0 sc1\ns_waitcnt vmcnt(0)")
    a("v_mov_b32 v3, 64\nbuffer_atomic_add v5, v3, s[12:15], 0 offen sc0 sc1\ns_waitcnt vmcnt(0)")
    a(f"v_mov_b32 v3, {L_MISC}\nds_write_b64 v3, v[4:5]\ns_waitcnt lgkmcnt(0)\ns_mov_b64 exec, -1")
    a("L_ch_tk:\ns_barrier")
    a(f"v_mov_b32 v3, {L_MISC}\nds_read_b64 v[4:5], v3\ns_waitcnt lgkmcnt(0)\nv_readfirstlane_b32 s35, v4\nv_readfirstlane_b32 s30, v5\ns_barrier")
    a("s_mov_b32 s63, 0\ns_mov_b32 s32, 0")
    a("s_cmp_lt_u32 s34, 2\ns_cselect_b32 s31, 1, 0\ns_cmp_lt_u32 s35, 32\ns_cselect_b32 s18, 1, 0\ns_and_b32 s31, s31, s18")
    a("s_cmp_eq_u32 s31, 1\ns_cbranch_scc1 L_ch_setup")
    a("s_cmp_lt_u32 s30, 64\ns_cbranch_scc1 L_ch_censusB")
    a("s_branch L_ch_helper")
    a("L_ch_setup:")
    a("s_lshr_b32 s36, s35, 1\ns_lshl_b32 s18, s34, 4\ns_add_u32 s36, s36, s18")
    a("s_and_b32 s37, s35, 1")
    a("s_lshr_b32 s38, s35, 3\ns_and_b32 s39, s35, 7")
    a("s_lshl_b32 s40, s34, 2\ns_add_u32 s40, s40, s38")
    a("v_and_b32 v1, 15, v0\nv_lshrrev_b32 v2, 4, v0")
    a("v_cmp_gt_u32 s[20:21], 8, v1\nv_cmp_gt_u32 s[22:23], 8, v0\nv_cmp_gt_u32 s[24:25], 32, v0")
    a("v_cmp_eq_u32 s[26:27], s16, v2\ns_nop 1\ns_and_b64 s[26:27], s[26:27], s[20:21]")
    a("v_lshlrev_b32 v8, 4, v0")
    a("s_lshl_b32 s18, s36, 3\ns_lshl_b32 s19, s16, 1\ns_add_u32 s18, s18, s19\ns_mul_i32 s18, s18, 20480")
    a(f"s_add_u32 s41, s18, {WS['WQF']}\ns_add_u32 s42, s18, {WS['WKF']}")
    a("s_lshl_b32 s18, s36, 3\ns_lshl_b32 s19, s37, 2\ns_add_u32 s18, s18, s19\ns_add_u32 s18, s18, s16\ns_mul_i32 s18, s18, 20480")
    a(f"s_add_u32 s43, s18, {WS['WVF']}")
    def wload(dst, sbase, nfr, first):
        for f in range(nfr):
            blk, rem = divmod(first + f, 4)
            a(f"s_add_u32 s44, s{sbase}, {blk*4096}")
            a(f"buffer_load_dwordx4 {dst(f)}, v8, s[8:11], s44 offen offset:{rem*1024}")
    wload(lambda f: f"a[{4*f}:{4*f+3}]", 41, 40, 0)
    a("s_waitcnt vmcnt(20)")
    wload(lambda f: f"a[{160+4*f}:{163+4*f}]", 42, 20, 0)
    a("s_waitcnt vmcnt(20)")
    wload(lambda f: f"v[{176+4*f}:{179+4*f}]", 42, 20, 20)
    a("s_waitcnt vmcnt(20)")
    wload(lambda f: f"v[{96+4*f}:{99+4*f}]", 43, 20, 0)
    a("s_mul_i32 s18, s39, 5\ns_lshl_b32 s18, s18, 7\ns_lshl_b32 s19, s40, 4\ns_add_u32 s18, s18, s19\ns_lshl_b32 s19, s16, 2\ns_add_u32 s18, s18, s19\ns_lshl_b32 s18, s18, 10")
    a(f"s_add_u32 s44, s18, {WS['WOF']}")
    a("s_lshl_b32 s45, s16, 12")
    for t in range(5):
        a(f"s_add_u32 s46, s44, {t*128*1024}\ns_add_u32 s47, s45, {L_WO + t*16384}\ns_mov_b32 m0, s47\ns_nop 0")
        for k in range(4):
            a(f"buffer_load_dwordx4 v8, s[8:11], s46 offen offset:{k*1024} lds")
    a("s_mul_i32 s18, s16, 2560\nv_add_u32 v3, s18, v8")
    for i in range(3):
        a(f"v_add_u32 v24, {1024*i}, v8\nv_mov_b32 v25, 1280\nv_cmp_le_u32 vcc, v25, v24\ns_nop 1")
        a(f"v_mov_b32 v26, {MSTR-1280}\nv_cndmask_b32 v26, 0, v26, vcc\nv_add_u32 v24, v24, v26")
        a(f"s_mul_i32 s18, s16, {2*MSTR}\ns_add_u32 s18, s18, {L_MEM}\nv_add_u32 v{4+i}, s18, v24")
    a(f"v_and_b32 v24, 7, v1\nv_mul_u32_u24 v24, {MSTR}, v24\nv_lshlrev_b32 v25, 4, v2\nv_add_u32 v7, v24, v25\nv_add_u32 v7, {L_MEM}, v7")
    a(f"s_lshl_b32 s18, s16, 12\ns_add_u32 s18, s18, {L_WO}\nv_add_u32 v9, s18, v8\nv_add_u32 v10, {3*16384}, v9")
    a("s_lshl_b32 s18, s39, 1\ns_lshr_b32 s19, s16, 1\ns_add_u32 s18, s18, s19\ns_lshl_b32 s18, s18, 9")
    a("s_and_b32 s19, s16, 1\ns_lshl_b32 s19, s19, 3\ns_add_u32 s18, s18, s19")
    a("v_lshlrev_b32 v24, 6, v1\nv_lshlrev_b32 v25, 4, v2\nv_add3_u32 v11, v24, v25, s18")
    a("v_and_b32 v24, 7, v1\nv_lshlrev_b32 v24, 6, v24\ns_lshl_b32 s18, s16, 11\nv_add3_u32 v12, v24, v25, s18")
    a("v_lshlrev_b32 v24, 7, v2\nv_and_b32 v25, 7, v1\nv_lshlrev_b32 v25, 4, v25\nv_add_u32 v24, v24, v25\nv_lshrrev_b32 v25, 3, v1")
    a(f"s_mul_i32 s18, s16, 1536\ns_add_u32 s18, s18, {L_SP}\nv_add_u32 v13, s18, v24")
    a(f"v_mul_u32_u24 v26, 1536, v25\nv_add_u32 v26, v26, v24\nv_add_u32 v94, {L_SP}, v26")
    a(f"s_mul_i32 s18, s16, 2560\ns_add_u32 s18, s18, {L_WP}\nv_add_u32 v20, s18, v24")
    a(f"v_mul_u32_u24 v26, 2560, v25\nv_add_u32 v26, v26, v24\ns_lshl_b32 s18, s16, 9\ns_add_u32 s18, s18, {L_WP}\nv_add_u32 v21, s18, v26\nv_add_u32 v95, {L_WP+2048}, v26")
    a("s_mul_i32 s18, s39, 5\ns_add_u32 s19, s18, s16\ns_lshl_b32 s19, s19, 2\nv_add_u32 v24, s19, v2\nv_lshlrev_b32 v24, 9, v24")
    a("s_lshl_b32 s19, s38, 7\nv_lshlrev_b32 v25, 4, v1\nv_add3_u32 v14, v24, v25, s19")
    a("s_add_u32 s18, s18, 4\ns_lshl_b32 s18, s18, 2\nv_add_u32 v24, s18, v2\nv_lshlrev_b32 v24, 9, v24\nv_add3_u32 v15, v24, v25, s19")
    a(f"s_mul_i32 s18, s34, {PSZ}\ns_add_u32 s18, s18, {WS['PL']}")
    a(f"s_xor_b32 s19, s34, 1\ns_mul_i32 s19, s19, {PSZ}\ns_add_u32 s19, s19, {WS['PR']}")
    a("v_mov_b32 v24, s19\nv_mov_b32 v25, s18\nv_cndmask_b32 v24, v24, v25, s[24:25]")
    a("v_and_b32 v25, 31, v0\nv_lshlrev_b32 v25, 4, v25\nv_add_u32 v24, v24, v25")
    a("s_lshl_b32 s18, s35, 2\ns_add_u32 s18, s18, s16\ns_lshl_b32 s19, s18, 9\nv_add_u32 v16, s19, v24")
    a("s_add_u32 s19, s35, 128\ns_lshl_b32 s19, s19, 9\nv_add_u32 v17, s19, v24")
    a("v_mul_u32_u24 v24, 1280, v0\ns_lshl_b32 s18, s18, 3\nv_add_u32 v18, s18, v24")
    a("s_add_u32 s19, s35, 128\ns_lshl_b32 s19, s19, 3\nv_add_u32 v19, s19, v24")
    a("s_lshl_b32 s18, s37, 2\ns_add_u32 s18, s18, s16\ns_lshl_b32 s61, s18, 10")
    a("s_lshl_b32 s19, s18, 9\nv_lshlrev_b32 v24, 3, v0\nv_add_u32 v23, s19, v24")
    a("s_lshl_b32 s19, s16, 10\nv_add_u32 v22, s19, v8")
    a(f"s_lshl_b32 s18, s36, 13\ns_add_u32 s47, s18, {WS['KX']}\ns_add_u32 s48, s18, {WS['VX']}\ns_add_u32 s48, s48, s61")
    a(f"s_lshl_b32 s18, s36, 12\ns_add_u32 s49, s18, {WS['KM']}\ns_add_u32 s50, s18, {WS['VM']}")
    a(f"s_mul_i32 s41, s34, {65*10240}\ns_add_u32 s41, s41, {WS['MEMB']}")
    a(f"s_lshl_b32 s42, s40, 13\ns_add_u32 s42, s42, {WS['OEX']}")
    a("s_mov_b32 s17, 0\ns_mov_b32 s51, 0")
    a(f"s_mul_i32 s62, s16, 3072\ns_add_u32 s62, s62, {L_KV}")
    def kv_prefetch():
        a(f"s_and_b32 s18, s54, 1\ns_mul_i32 s18, s18, 12288\ns_add_u32 s18, s18, s62\ns_mov_b32 m0, s18\ns_add_u32 s19, s47, 3072\ns_nop 0")
        a("buffer_load_dwordx4 v22, s[8:11], s47 offen sc1 lds\nbuffer_load_dwordx4 v22, s[8:11], s19 offen offset:1024 sc1 lds")
        a("s_sub_u32 s19, s48, 2048\nbuffer_load_dwordx4 v8, s[8:11], s19 offen offset:2048 sc1 lds")
    a("v_mov_b32 v1, v94\nv_mov_b32 v2, v95")
    a("s_mov_b32 s54, 0")
    a(f"s_lshl_b32 s18, s36, 3\ns_add_u32 s18, s18, {WS['FLAGS']+1024}")
    a("L_ch_fl0:")
    a("v_mov_b32 v36, 0\nbuffer_load_dwordx2 v[38:39], v36, s[8:11], s18 offen sc1\nbuffer_load_dwordx2 v[40:41], v36, s[8:11], s18 offen offset:256 sc1\ns_waitcnt vmcnt(0)")
    a("v_or_b32 v37, v38, v39\nv_or3_b32 v37, v37, v40, v41\ns_nop 0\nv_readfirstlane_b32 s19, v37\ns_cmp_lg_u32 s19, 0\ns_cbranch_scc1 L_ch_fl0")
    kv_prefetch()
    a("s_waitcnt vmcnt(0)\ns_barrier")
    a("s_cmp_eq_u32 s32, 1\ns_cbranch_scc1 L_ch_step")
    def census(tag, setup_done):
        a(f"L_ch_census{tag}:")
        a("v_mov_b32 v24, 64\nbuffer_load_dword v25, v24, s[12:15], 0 offen sc1\ns_waitcnt vmcnt(0)\nv_readfirstlane_b32 s18, v25")
        a(f"s_cmp_ge_u32 s18, {GRID}\ns_cbranch_scc1 L_ch_cen2{tag}\ns_sleep 4\ns_branch L_ch_census{tag}")
        a(f"L_ch_cen2{tag}:")
        a("v_mov_b32 v24, 0\nbuffer_load_dwordx2 v[26:27], v24, s[12:15], 0 offen sc1\ns_waitcnt vmcnt(0)\nv_readfirstlane_b32 s18, v26\nv_readfirstlane_b32 s19, v27")
        a("s_mov_b32 s32, 1\ns_min_u32 s18, s18, s19")
        a(f"s_cmp_ge_u32 s18, {NEED}\ns_cbranch_scc1 {'L_ch_step' if setup_done else 'L_ch_helper'}")
        a("s_cmp_lt_u32 s30, 64\ns_cbranch_scc0 L_ch_helper")
        a("s_mov_b32 s63, 1\ns_lshr_b32 s34, s30, 5\ns_and_b32 s35, s30, 31\ns_branch L_ch_setup")
    census("A", True)
    census("B", False)
    def st(ins):
        l1 = a.label("chs"); l2 = a.label("chs")
        a(f"s_cmp_eq_u32 s63, 0\ns_cbranch_scc1 {l1}\n{ins} sc1\ns_branch {l2}\n{l1}:\n{ins}\n{l2}:")

    a("L_ch_step:")
    if PROF:
        a("s_cmp_lg_u32 s17, 11\ns_cbranch_scc1 L_ch_noprof")
        a("s_lshl_b32 s18, s34, 5\ns_add_u32 s18, s18, s35\ns_lshl_b32 s18, s18, 2\ns_add_u32 s18, s18, s16\ns_lshl_b32 s18, s18, 6")
        a(f"s_add_u32 s18, s18, {WS['OX']}")
        a("s_waitcnt lgkmcnt(0)\ns_mov_b64 exec, 1\nv_mov_b32 v24, 0")
        for i in range(12):
            a(f"v_mov_b32 v25, s{64+2*i}\nbuffer_store_dword v25, v24, s[8:11], s18 offen offset:{4*i}")
        for i in range(3):
            a(f"v_mov_b32 v25, s{90+i}\nbuffer_store_dword v25, v24, s[8:11], s18 offen offset:{48+4*i}")
        a("s_mov_b64 exec, -1\nL_ch_noprof:\ns_mov_b32 s90, 0\ns_mov_b32 s91, 0\ns_mov_b32 s92, 0")
    stamp(0)
    a("s_branch L_ch_gpoll_g\nL_ch_gpoll:\n" + (f"s_sleep {SLEEP}\n" if SLEEP else "") + "L_ch_gpoll_g:" + ("\ns_add_u32 s90, s90, 1" if PROF else ""))
    a("buffer_load_dwordx4 v[24:27], v3, s[56:59], s51 offen sc1\nbuffer_load_dwordx4 v[28:31], v3, s[56:59], s51 offen offset:1024 sc1")
    a("s_mov_b64 exec, s[24:25]\nbuffer_load_dwordx4 v[32:35], v3, s[56:59], s51 offen offset:2048 sc1\ns_mov_b64 exec, -1")
    a("s_waitcnt vmcnt(0)")
    a("v_max_u32 v36, v24, v25\nv_max3_u32 v36, v36, v26, v27\nv_max3_u32 v36, v36, v28, v29\nv_max3_u32 v36, v36, v30, v31")
    a("v_max_u32 v37, v32, v33\nv_max3_u32 v37, v37, v34, v35\nv_cndmask_b32 v37, 0, v37, s[24:25]\nv_max_u32 v36, v36, v37")
    a("v_cmp_eq_u32 vcc, -1, v36\ns_cbranch_vccnz L_ch_gpoll")
    stamp(1)
    a("ds_write_b128 v4, v[24:27]\nds_write_b128 v5, v[28:31]")
    a("s_mov_b64 exec, s[24:25]\nds_write_b128 v6, v[32:35]\ns_mov_b64 exec, -1")
    a(f"s_cmp_ge_u32 s17, {NSEG-2}\ns_cbranch_scc1 L_ch_nopf")
    a(f"s_add_u32 s47, s47, {H*8192}\ns_add_u32 s48, s48, {H*8192}\ns_add_u32 s54, s17, 1")
    a("s_and_b32 s18, s54, 7\ns_cmp_lg_u32 s18, 0\ns_cbranch_scc1 L_ch_flok")
    a(f"s_lshl_b32 s18, s54, 2\ns_lshr_b32 s19, s36, 1\ns_add_u32 s18, s18, s19\ns_lshl_b32 s18, s18, 2\ns_add_u32 s18, s18, {WS['FLAGS']}")
    a("L_ch_fl:")
    a("v_mov_b32 v36, 0\nbuffer_load_dword v37, v36, s[8:11], s18 offen sc1\nbuffer_load_dword v38, v36, s[8:11], s18 offen offset:64 sc1\ns_waitcnt vmcnt(0)")
    a("v_or_b32 v37, v37, v38\ns_nop 0\nv_readfirstlane_b32 s19, v37\ns_cmp_lg_u32 s19, 0\ns_cbranch_scc1 L_ch_fl")
    a("L_ch_flok:")
    kv_prefetch()
    a("L_ch_nopf:")
    a("s_lshl_b32 s18, s16, 11\nv_lshlrev_b32 v90, 5, v0\nv_add_u32 v90, s18, v90")
    a(f"s_mov_b32 m0, {L_MISC+256}\ns_nop 0\nbuffer_load_dword v90, s[8:11], s42 offen sc1 lds")
    a("s_mov_b32 s56, s8\ns_mov_b32 s57, s9\ns_mov_b32 s58, s10")
    a("s_lshr_b32 s60, s17, 1\ns_and_b32 s60, s60, 1")
    a(f"s_and_b32 s18, s17, 1\ns_mul_i32 s46, s18, {2*PSZ}")
    a(f"s_mul_i32 s19, s18, 12288\ns_add_u32 s19, s19, s62\nv_add_u32 v88, s19, v8")
    a(f"s_mul_i32 s18, s34, {PSZ}\ns_add_u32 s18, s18, s46\ns_add_u32 s43, s18, {WS['PL']}\ns_add_u32 s44, s18, {WS['PR']}")
    a("s_waitcnt lgkmcnt(0)\ns_barrier")
    stamp(2)
    BB = [44, 48, 52, 56]
    for j in range(3):
        a(f"ds_read_b128 v[{BB[j]}:{BB[j]+3}], v7 offset:{64*j}")
    a("ds_read_b128 v[60:63], v88\nds_read_b128 v[64:67], v88 offset:1024\nds_read_b128 v[82:85], v88 offset:2048")
    for ks in range(20):
        if ks + 3 < 20:
            b = BB[(ks + 3) % 4]
            a(f"ds_read_b128 v[{b}:{b+3}], v7 offset:{64*(ks+3)}")
            a(f"s_waitcnt lgkmcnt({6 if ks < 3 else 3})" if ks != 2 else "s_waitcnt lgkmcnt(3)")
        else:
            a(f"s_waitcnt lgkmcnt({19-ks})")
        b = BB[ks % 4]
        c = (lambda d: "0") if ks == 0 else (lambda d: f"v[{d}:{d+3}]")
        a(f"v_mfma_f32_16x16x32_bf16 v[24:27], a[{4*ks}:{4*ks+3}], v[{b}:{b+3}], {c(24)}")
        a(f"v_mfma_f32_16x16x32_bf16 v[28:31], a[{80+4*ks}:{83+4*ks}], v[{b}:{b+3}], {c(28)}")
        a(f"v_mfma_f32_16x16x32_bf16 v[32:35], a[{160+4*ks}:{163+4*ks}], v[{b}:{b+3}], {c(32)}")
        a(f"v_mfma_f32_16x16x32_bf16 v[36:39], v[{176+4*ks}:{179+4*ks}], v[{b}:{b+3}], {c(36)}")
        a(f"v_mfma_f32_16x16x32_bf16 v[40:43], v[{b}:{b+3}], v[{96+4*ks}:{99+4*ks}], {c(40)}")
    a("s_nop 3")
    for t in range(4):
        if t == 3:
            a("s_nop 3")
        a(f"v_cvt_pk_bf16_f32 v{44+2*t}, v{24+4*t}, v{25+4*t}\nv_cvt_pk_bf16_f32 v{45+2*t}, v{26+4*t}, v{27+4*t}")
    stamp(3)
    a(f"s_cmp_eq_u32 s17, {NSEG-1}\ns_cbranch_scc1 L_ch_last")
    a("v_mfma_f32_16x16x32_bf16 v[72:75], v[60:63], v[44:47], 0")
    a("v_mfma_f32_16x16x32_bf16 v[76:79], v[64:67], v[44:47], 0")
    a("v_mfma_f32_16x16x32_bf16 v[68:71], v[48:51], v[44:47], 0")
    a("s_cmp_lg_u32 s37, 0\ns_cbranch_scc1 L_ch_nokm")
    a("buffer_store_dwordx4 v[48:51], v22, s[8:11], s49 offen")
    a("L_ch_nokm:")
    a("v_cvt_pk_bf16_f32 v80, v40, v41\nv_cvt_pk_bf16_f32 v81, v42, v43")
    a(f"v_mov_b32 v36, 0xff800000\nv_mov_b32 v39, {hex(f32bits(SCALE_LOG2E))}\nv_mov_b32 v66, 0\nv_mov_b32 v67, 0\nv_mov_b32 v86, 0\nv_mov_b32 v87, 0")
    a("s_mov_b64 exec, s[20:21]")
    a("ds_write_b128 v13, v[72:75] offset:512\nds_write_b128 v13, v[76:79] offset:1024\nds_write_b128 v13, v[68:71]")
    a("s_mov_b64 exec, -1")
    a("s_waitcnt lgkmcnt(0)\ns_barrier")
    stamp(4)
    for t in range(3):
        a(f"ds_read_b128 v[{24+4*t}:{27+4*t}], v1 offset:{512*t}\nds_read_b128 v[{40+4*t}:{43+4*t}], v1 offset:{3072+512*t}")
    for t in range(3):
        a(f"s_waitcnt lgkmcnt({4-2*t})")
        for r in range(4):
            a(f"v_add_f32 v{40+4*t+r}, v{24+4*t+r}, v{40+4*t+r}")
    a("s_nop 1")
    for i in range(12):
        a(f"v_add_f32 v{24+i}, v{40+i}, v{40+i} row_ror:8")
    sc = list(range(24, 36))
    P = a
    for r in range(4):
        P(f"v_cndmask_b32 v{24+r}, v36, v{24+r}, s[24:25]")
    P(f"v_max3_f32 v37, v{sc[4]}, v{sc[5]}, v{sc[6]}\nv_max3_f32 v38, v{sc[7]}, v{sc[8]}, v{sc[9]}")
    P(f"v_max3_f32 v37, v37, v{sc[10]}, v{sc[11]}\nv_max3_f32 v38, v38, v{sc[0]}, v{sc[1]}")
    P(f"v_max3_f32 v37, v37, v{sc[2]}, v{sc[3]}\nv_max_f32 v37, v37, v38")
    P("v_mov_b32 v38, v37\ns_nop 1\nv_permlane16_swap_b32 v37, v38")
    P("v_max_f32 v37, v37, v38")
    P("v_mov_b32 v38, v37\ns_nop 1\nv_permlane32_swap_b32 v37, v38")
    P("v_max_f32 v37, v37, v38")
    P("v_mul_f32 v37, v37, v39")
    for i in range(12):
        P(f"v_fma_f32 v{sc[i]}, v{sc[i]}, v39, -v37")
    for i in range(12):
        P(f"v_exp_f32 v{sc[i]}, v{sc[i]}")
    P(f"v_add_f32 v37, v{sc[0]}, v{sc[1]}\nv_add_f32 v38, v{sc[2]}, v{sc[3]}")
    for i in range(4, 12, 2):
        P(f"v_add_f32 v37, v37, v{sc[i]}\nv_add_f32 v38, v38, v{sc[i+1]}")
    P("v_add_f32 v37, v37, v38")
    P("v_mov_b32 v38, v37\ns_nop 1\nv_permlane16_swap_b32 v37, v38")
    P("v_add_f32 v37, v37, v38")
    P("v_mov_b32 v38, v37\ns_nop 1\nv_permlane32_swap_b32 v37, v38")
    P("v_add_f32 v37, v37, v38")
    P("v_rcp_f32 v37, v37\ns_nop 0")
    for i in range(12):
        P(f"v_mul_f32 v{sc[i]}, v{sc[i]}, v37")
    P("v_cvt_pk_bf16_f32 v64, v32, v33\nv_cvt_pk_bf16_f32 v65, v34, v35")
    P("v_cvt_pk_bf16_f32 v60, v24, v25\nv_cvt_pk_bf16_f32 v61, v26, v27")
    P("v_cvt_pk_bf16_f32 v62, v28, v29\nv_cvt_pk_bf16_f32 v63, v30, v31")
    a("s_nop 1\nv_mfma_f32_16x16x32_bf16 v[24:27], v[84:87], v[64:67], 0")
    a("v_mfma_f32_16x16x32_bf16 v[24:27], v[80:83], v[60:63], v[24:27]")
    def areg(f):
        if f < 5: return f"v[{60+4*f}:{63+4*f}]"
        if f < 8: return f"v[{84+4*(f-5)}:{87+4*(f-5)}]"
        return f"a[{240+4*(f-8)}:{243+4*(f-8)}]"
    def aread(f, dst):
        k, t = divmod(f, 5)
        a(f"ds_read_b128 {dst}, v{9 if t < 3 else 10} offset:{(t % 3)*16384 + k*1024}")
    for f in range(8, 12):
        aread(f, areg(f))
    a("s_nop 6")
    a("v_cvt_pk_bf16_f32 v28, v24, v25\nv_cvt_pk_bf16_f32 v29, v26, v27")
    a("v_min_u32 v28, -2, v28\nv_min_u32 v29, -2, v29")
    a("s_mov_b64 exec, s[20:21]")
    st("buffer_store_dwordx2 v[28:29], v11, s[8:11], s42 offen")
    a("s_mov_b64 exec, -1")
    stamp(5)
    for f in range(8):
        aread(f, areg(f))
    a("s_branch L_ch_opoll_g\nL_ch_opoll:\n" + (f"s_sleep {SLEEP}\n" if SLEEP else "") + "L_ch_opoll_g:" + ("\ns_add_u32 s91, s91, 1" if PROF else ""))
    for k in range(4):
        a(f"buffer_load_dwordx4 v[{24+4*k}:{27+4*k}], v12, s[8:11], s42 offen offset:{512*k} sc1")
    a("s_waitcnt vmcnt(0)")
    a("v_max_u32 v40, v24, v25\nv_max3_u32 v40, v40, v26, v27")
    for k in range(1, 4):
        a(f"v_max3_u32 v40, v40, v{24+4*k}, v{25+4*k}\nv_max3_u32 v40, v40, v{26+4*k}, v{27+4*k}")
    a("v_cmp_eq_u32 vcc, -1, v40\ns_cbranch_vccnz L_ch_opoll")
    stamp(6)
    a("buffer_store_dwordx2 v[80:81], v23, s[8:11], s50 offen")
    a("s_waitcnt lgkmcnt(0)")
    late = {}
    for f in range(20):
        k, t = divmod(f, 5)
        d = 40 + 4*t
        src = areg(f) if f < 12 else late[f]
        if f >= 12:
            a(f"s_waitcnt lgkmcnt({19-f})")
        a(f"v_mfma_f32_16x16x32_bf16 v[{d}:{d+3}], {src}, v[{24+4*k}:{27+4*k}], {'0' if k == 0 else f'v[{d}:{d+3}]'}")
        if 1 <= f <= 8:
            late[11 + f] = areg(f - 1)
            aread(11 + f, areg(f - 1))
    a("v_mov_b32 v92, s60\ns_mov_b64 exec, s[20:21]\ns_nop 2")
    for t in range(5):
        if t == 4:
            a("s_nop 4")
        a(f"ds_write_b128 v20, v[{40+4*t}:{43+4*t}] offset:{512*t}")
    a("s_mov_b64 exec, -1")
    a("s_waitcnt lgkmcnt(0)\ns_barrier")
    stamp(7)
    a("ds_read_b128 v[28:31], v21\nds_read_b128 v[32:35], v21 offset:5120\nds_read_b128 v[44:47], v2\nds_read_b128 v[48:51], v2 offset:5120")
    a("s_waitcnt lgkmcnt(2)")
    for r in range(4):
        a(f"v_add_f32 v{28+r}, v{28+r}, v{32+r}")
    a("s_nop 1")
    for r in range(4):
        a(f"v_add_f32 v{24+r}, v{28+r}, v{28+r} row_ror:8")
    for r in range(4):
        a(f"v_and_or_b32 v{24+r}, v{24+r}, -2, v92")
    a("s_mov_b64 exec, s[20:21]")
    a("buffer_store_dwordx4 v[24:27], v14, s[8:11], s44 offen sc1")
    st("buffer_store_dwordx4 v[24:27], v14, s[8:11], s43 offen")
    a("s_mov_b64 exec, -1")
    a("s_waitcnt lgkmcnt(0)")
    for r in range(4):
        a(f"v_add_f32 v{44+r}, v{44+r}, v{48+r}")
    a("s_nop 1")
    for r in range(4):
        a(f"v_add_f32 v{40+r}, v{44+r}, v{44+r} row_ror:8")
    for r in range(4):
        a(f"v_and_or_b32 v{40+r}, v{40+r}, -2, v92")
    a("s_mov_b64 exec, s[26:27]")
    a("buffer_store_dwordx4 v[40:43], v15, s[8:11], s44 offen sc1")
    st("buffer_store_dwordx4 v[40:43], v15, s[8:11], s43 offen")
    a("s_mov_b64 exec, -1")
    stamp(8)
    def check(regs):
        a(f"v_xor_b32 v60, v{regs[0]}, v92")
        for r in regs[1:]:
            a(f"v_xor_b32 v61, v{r}, v92\nv_or_b32 v60, v60, v61")
        a("v_and_b32 v60, 1, v60\nv_cmp_ne_u32 vcc, 0, v60")
    def tree(src, n):
        for j in range(n):
            a(f"v_add_f32 v{24+j}, v{src+j}, v{src+j} row_ror:8")
        for j in range(n):
            a(f"v_mov_b32 v{32+j}, v{24+j}")
        a("s_nop 1")
        for j in range(n):
            a(f"v_permlane16_swap_b32 v{24+j}, v{32+j}")
        for j in range(n):
            a(f"v_add_f32 v{24+j}, v{24+j}, v{32+j}")
        for j in range(n):
            a(f"v_mov_b32 v{32+j}, v{24+j}")
        a("s_nop 1")
        for j in range(n):
            a(f"v_permlane32_swap_b32 v{24+j}, v{32+j}")
        for j in range(n):
            a(f"v_add_f32 v{24+j}, v{24+j}, v{32+j}")
        for j in range(0, n, 2):
            a(f"v_cvt_pk_bf16_f32 v{40+j//2}, v{24+j}, v{25+j}")
        for j in range(0, n, 2):
            a(f"v_min_u32 v{40+j//2}, -2, v{40+j//2}")
    a("s_add_u32 s51, s41, 10240\ns_mov_b32 s41, s51")
    a("s_cmp_lg_u32 s16, 0\ns_cbranch_scc1 L_ch_rB")
    NS = 3
    for path, nl in (("A", 2), ("B", 1)):
        if path == "B":
            a("L_ch_rB:")
        base = [62 + 8*i for i in range(NS)]
        def issue(i):
            a(f"buffer_load_dwordx4 v[{base[i]}:{base[i]+3}], v16, s[8:11], s46 offen sc1")
            if nl == 2:
                a(f"buffer_load_dwordx4 v[{base[i]+4}:{base[i]+7}], v17, s[8:11], s46 offen sc1")
        for i in range(NS):
            issue(i)
            if i < NS - 1:
                a(f"s_sleep {RSL}")
        a(f"L_ch_rp{path}:")
        for i in range(NS):
            if PROF:
                a("s_add_u32 s92, s92, 1")
            a(f"s_waitcnt vmcnt({(NS-1)*nl})")
            check(list(range(base[i], base[i] + 4*nl)))
            a(f"s_cbranch_vccz L_ch_rd{path}{i}")
            issue(i)
        a(f"s_branch L_ch_rp{path}")
        for i in range(NS):
            a(f"L_ch_rd{path}{i}:")
            stamp(9)
            tree(base[i], 4*nl)
            a(f"s_branch L_ch_rpub{path}")
        a(f"L_ch_rpub{path}:")
        a("s_mov_b64 exec, s[22:23]")
        st("buffer_store_dwordx2 v[40:41], v18, s[8:11], s51 offen")
        if nl == 2:
            st("buffer_store_dwordx2 v[42:43], v19, s[8:11], s51 offen")
        a("s_mov_b64 exec, -1")
        if path == "A":
            a("s_branch L_ch_rdone")
    a("L_ch_rdone:")
    stamp(10)
    a(f"s_add_u32 s42, s42, {8*8192}\ns_add_u32 s49, s49, {H*4096}\ns_add_u32 s50, s50, {H*4096}")
    a("s_add_u32 s17, s17, 1\ns_branch L_ch_step")
    a("L_ch_last:")
    a("s_cmp_lg_u32 s37, 0\ns_cbranch_scc1 L_ch_nokm2")
    a("buffer_store_dwordx4 v[48:51], v22, s[8:11], s49 offen")
    a("L_ch_nokm2:")
    a("v_cvt_pk_bf16_f32 v80, v40, v41\nv_cvt_pk_bf16_f32 v81, v42, v43")
    a("buffer_store_dwordx2 v[80:81], v23, s[8:11], s50 offen")
    a("s_branch L_ch_done")
    a("L_ch_helper:")
    a(f"s_load_dwordx2 s[6:7], s[0:1], {KA['dbg']}\ns_waitcnt lgkmcnt(0)")
    a.srd(12, 6, 256)
    a("s_cmp_lg_u32 s16, 0\ns_cbranch_scc1 L_ch_htk")
    a("s_mov_b64 exec, 1\nv_mov_b32 v3, 68\nv_mov_b32 v4, 1")
    a("buffer_atomic_add v4, v3, s[12:15], 0 offen sc0 sc1\ns_waitcnt vmcnt(0)")
    a(f"v_mov_b32 v3, {L_MISC}\nds_write_b32 v3, v4\ns_waitcnt lgkmcnt(0)\ns_mov_b64 exec, -1")
    a("L_ch_htk:\ns_barrier")
    a(f"v_mov_b32 v3, {L_MISC}\nds_read_b32 v4, v3\ns_waitcnt lgkmcnt(0)\nv_readfirstlane_b32 s17, v4\ns_barrier")
    a("s_cmp_ge_u32 s17, 480\ns_cbranch_scc1 L_ch_done")
    a("s_mov_b32 s55, 0")
    a("s_cmp_ge_u32 s17, 128\ns_cbranch_scc1 L_ch_hkv")
    a("s_mov_b32 s18, 0\ns_lshr_b32 s19, s17, 6\ns_add_u32 s19, s19, 1\ns_and_b32 s29, s17, 63\ns_lshl_b32 s29, s29, 1\ns_mov_b32 s28, 2")
    a(f"s_lshl_b32 s55, s17, 2\ns_add_u32 s55, s55, {WS['FLAGS']+1024}")
    a("s_branch L_ch_hgo")
    a("L_ch_hkv:")
    a("s_sub_u32 s17, s17, 128")
    a("s_cmp_ge_u32 s17, 224\ns_cbranch_scc1 L_ch_hq")
    a("s_lshr_b32 s18, s17, 5\ns_add_u32 s18, s18, 1\ns_and_b32 s20, s17, 31")
    a("s_lshr_b32 s19, s20, 4\ns_add_u32 s19, s19, 1\ns_and_b32 s29, s20, 15\ns_lshl_b32 s29, s29, 3\ns_mov_b32 s28, 8")
    a(f"s_lshl_b32 s55, s18, 5\ns_add_u32 s55, s55, s20\ns_lshl_b32 s55, s55, 2\ns_add_u32 s55, s55, {WS['FLAGS']}")
    a("s_branch L_ch_hgo")
    a("L_ch_hq:")
    a("s_sub_u32 s17, s17, 224")
    a("s_lshr_b32 s18, s17, 4\ns_and_b32 s20, s17, 7\ns_and_b32 s21, s17, 8")
    a("s_mov_b32 s19, 0\ns_lshl_b32 s29, s20, 4\ns_mov_b32 s28, 16")
    a("s_cmp_eq_u32 s21, 0\ns_cbranch_scc1 L_ch_hgo")
    a("s_mov_b32 s19, 3\ns_mul_i32 s29, s20, 7\ns_mov_b32 s28, 14\ns_cmp_lt_u32 s20, 6\ns_cbranch_scc1 L_ch_hgo")
    a("s_mov_b32 s28, 12\ns_cmp_eq_u32 s20, 6\ns_cselect_b32 s29, 42, 48")
    a("L_ch_hgo:")
    k_gemm1.body(a, "chh")
    a("s_waitcnt vmcnt(0)\ns_barrier")
    a("s_cmp_eq_u32 s55, 0\ns_cbranch_scc1 L_ch_helper\ns_cmp_lg_u32 s16, 0\ns_cbranch_scc1 L_ch_helper")
    a("s_mov_b64 exec, 1\nv_mov_b32 v3, 0\nv_mov_b32 v4, 0\nbuffer_store_dword v4, v3, s[8:11], s55 offen sc1\ns_mov_b64 exec, -1")
    a("s_branch L_ch_helper")
    a("L_ch_done:\ns_endpgm")
    return name, GRID, 256, LDS, kd(name, 512, 96, 256)
```

```python
from common import *
GRID = 256
UB = 40960
LDS = 3 * UB
ACC = 64
AB = 96
GH = 128
TMP = 144

def f32bits(x):
    import struct
    return struct.unpack("<I", struct.pack("<f", x))[0]

def xreg(tt, ks):
    i = tt * 20 + ks
    return f"a[{4*i}:{4*i+3}]" if i < 64 else f"v[{192+4*(i-64)}:{195+4*(i-64)}]"

def gen(a):
    name = "gemm1_kernel"
    a.kernel_begin(name)
    a(f"s_cmp_ge_u32 s2, {GRID}\ns_cbranch_scc1 L_g1_done")
    a(f"s_load_dwordx2 s[4:5], s[0:1], {KA['ws']}")
    a("s_waitcnt lgkmcnt(0)")
    a.srd(8, 4, WS_BYTES)
    a("v_lshrrev_b32 v1, 6, v0\ns_nop 0\nv_readfirstlane_b32 s16, v1\nv_and_b32 v0, 63, v0")
    a("s_mov_b32 s18, 0\ns_lshr_b32 s19, s2, 7\ns_add_u32 s19, s19, 1\ns_and_b32 s29, s2, 127\ns_mov_b32 s28, 1")
    body(a, "g1")
    a("L_g1_done:\ns_endpgm")
    return name, GRID, 256, LDS, kd(name, 512, 96, 256)

def body(a, P):
    WT = "" if P == "g1" else " sc1"
    a(f"s_load_dwordx2 s[6:7], s[0:1], {KA['x']}")
    a("s_waitcnt lgkmcnt(0)")
    a.srd(12, 6, S * DM * 2)
    a("v_and_b32 v1, 15, v0\nv_lshrrev_b32 v2, 4, v0\nv_lshlrev_b32 v8, 4, v0")
    a("s_lshl_b32 s21, s18, 2\ns_add_u32 s21, s21, s16")
    a(f"s_mul_i32 s22, s21, {64*1280}")
    a("v_mul_u32_u24 v3, 1280, v1\nv_lshlrev_b32 v4, 4, v2\nv_add_u32 v3, v3, v4")
    for tt in range(4):
        a(f"s_add_u32 s23, s22, {tt*16*1280}")
        for ks in range(20):
            a(f"buffer_load_dwordx4 {xreg(tt, ks)}, v3, s[12:15], s23 offen offset:{64*ks}")
    a(f"s_cmp_eq_u32 s19, 3\ns_cbranch_scc1 L_{P}_ffnsetup")
    a(f"s_mul_i32 s24, s19, {WS['WKF']-WS['WQF']}\ns_add_u32 s24, s24, {WS['WQF']}")
    a(f"s_mul_i32 s26, s29, {UB}\ns_add_u32 s24, s24, s26\ns_add_u32 s25, s24, {UB}\ns_mov_b32 s27, {2*UB}")
    a(f"s_branch L_{P}_setup2")
    a(f"L_{P}_ffnsetup:")
    a(f"s_mul_i32 s26, s29, {UB}\ns_add_u32 s24, s26, {WS['WGF']}\ns_add_u32 s25, s26, {WS['WUF']}\ns_mov_b32 s27, {UB}")
    a(f"L_{P}_setup2:")
    assert WS['WVF'] - WS['WKF'] == WS['WKF'] - WS['WQF']
    a("s_mul_i32 s30, s16, 10240\nv_add_u32 v9, s30, v8")
    def issue(sbuf):
        a(f"s_add_u32 s31, s{sbuf}, s30\ns_mov_b32 m0, s31\ns_nop 0")
        for f in range(10):
            if f == 4 or f == 8:
                a(f"s_add_u32 s31, s31, 4096\ns_mov_b32 m0, s31\ns_add_u32 s33, s24, {f*1024}\ns_nop 0")
            src = "s24" if f < 4 else "s33"
            a(f"buffer_load_dwordx4 v9, s[8:11], {src} offen offset:{(f%4)*1024} lds")
        a("s_add_u32 s33, s24, s27\ns_mov_b32 s24, s25\ns_mov_b32 s25, s33")
    a(f"s_mov_b32 s34, 0\ns_mov_b32 s35, {UB}\ns_mov_b32 s36, {2*UB}")
    issue(34)
    a(f"s_cmp_lt_u32 s28, 2\ns_cbranch_scc1 L_{P}_pro")
    issue(35); issue(36)
    a(f"L_{P}_pro:")
    a("s_mov_b32 s37, 0")
    a(f"s_mul_i32 s38, s21, {2*H*8192}")
    a(f"s_mul_i32 s39, s19, {WS['KX']-WS['QX']}\ns_add_u32 s39, s39, {WS['QX']}\ns_add_u32 s38, s38, s39")
    assert WS['VX'] - WS['KX'] == WS['KX'] - WS['QX']
    a(f"s_mul_i32 s40, s21, {4*54*1024}\ns_add_u32 s40, s40, {WS['HF']}")
    a(f"s_cmp_lt_u32 s28, 2\ns_cbranch_scc1 L_{P}_w0\ns_waitcnt vmcnt(20)\nL_{P}_w0:\ns_cmp_ge_u32 s28, 2\ns_cbranch_scc1 L_{P}_w1\ns_waitcnt vmcnt(0)\nL_{P}_w1:\ns_barrier")
    a(f"L_{P}_unit:")
    a("v_add_u32 v10, s34, v8")
    a(f"s_cmp_eq_u32 s19, 2\ns_cbranch_scc1 L_{P}_cv")
    def compute(swapped):
        for j in range(3):
            a(f"ds_read_b128 v[{AB+8*j}:{AB+8*j+3}], v10 offset:{1024*j}\nds_read_b128 v[{AB+8*j+4}:{AB+8*j+7}], v10 offset:{20480+1024*j}")
        for ks in range(20):
            if ks + 3 < 20:
                j = (ks + 3) % 4
                a(f"ds_read_b128 v[{AB+8*j}:{AB+8*j+3}], v10 offset:{1024*(ks+3)}\nds_read_b128 v[{AB+8*j+4}:{AB+8*j+7}], v10 offset:{20480+1024*(ks+3)}")
                a("s_waitcnt lgkmcnt(6)")
            else:
                a(f"s_waitcnt lgkmcnt({2*(19-ks)})")
            j = ks % 4
            for t in range(2):
                for tt in range(4):
                    d = ACC + (t*4+tt)*4
                    w = f"v[{AB+8*j+4*t}:{AB+8*j+4*t+3}]"
                    c = "0" if ks == 0 else f"v[{d}:{d+3}]"
                    if swapped:
                        a(f"v_mfma_f32_16x16x32_bf16 v[{d}:{d+3}], {xreg(tt, ks)}, {w}, {c}")
                    else:
                        a(f"v_mfma_f32_16x16x32_bf16 v[{d}:{d+3}], {w}, {xreg(tt, ks)}, {c}")
    compute(False)
    a(f"s_branch L_{P}_cd")
    a(f"L_{P}_cv:")
    compute(True)
    a(f"L_{P}_cd:")
    a(f"s_add_u32 s41, s37, 2\ns_cmp_lt_u32 s41, s28\ns_cbranch_scc1 L_{P}_w10\ns_waitcnt vmcnt(0)\ns_branch L_{P}_w\nL_{P}_w10:\ns_waitcnt vmcnt(10)\nL_{P}_w:")
    a("s_nop 7")
    a(f"s_cmp_eq_u32 s19, 3\ns_cbranch_scc1 L_{P}_effn")
    a(f"s_cmp_eq_u32 s19, 2\ns_cbranch_scc1 L_{P}_ev")
    a("s_add_u32 s41, s29, s37\ns_lshr_b32 s42, s41, 2\ns_lshl_b32 s42, s42, 13\ns_and_b32 s41, s41, 3\ns_lshl_b32 s41, s41, 10\ns_add_u32 s41, s41, s42\ns_add_u32 s41, s41, s38")
    for tt in range(4):
        d0 = ACC + tt*4; d1 = ACC + (4+tt)*4; o = TMP + 4*tt
        a(f"v_cvt_pk_bf16_f32 v{o}, v{d0}, v{d0+1}\nv_cvt_pk_bf16_f32 v{o+1}, v{d0+2}, v{d0+3}")
        a(f"v_cvt_pk_bf16_f32 v{o+2}, v{d1}, v{d1+1}\nv_cvt_pk_bf16_f32 v{o+3}, v{d1+2}, v{d1+3}")
        a(f"s_add_u32 s42, s41, {(tt>>1)*H*8192 + (tt&1)*4096}")
        a(f"buffer_store_dwordx4 v[{o}:{o+3}], v8, s[8:11], s42 offen{WT}")
    a(f"s_branch L_{P}_ed")
    a(f"L_{P}_ev:")
    a("s_add_u32 s41, s29, s37\ns_lshl_b32 s41, s41, 11\ns_add_u32 s41, s41, s38")
    for t in range(2):
        for sg in range(2):
            d0 = ACC + (t*4+2*sg)*4; d1 = d0 + 4; o = TMP + 4*(t*2+sg)
            a(f"v_cvt_pk_bf16_f32 v{o}, v{d0}, v{d0+1}\nv_cvt_pk_bf16_f32 v{o+1}, v{d0+2}, v{d0+3}")
            a(f"v_cvt_pk_bf16_f32 v{o+2}, v{d1}, v{d1+1}\nv_cvt_pk_bf16_f32 v{o+3}, v{d1+2}, v{d1+3}")
            a(f"s_add_u32 s42, s41, {sg*H*8192}")
            a(f"buffer_store_dwordx4 v[{o}:{o+3}], v8, s[8:11], s42 offen offset:{t*1024}{WT}")
    a(f"s_branch L_{P}_ed")
    a(f"L_{P}_effn:")
    a(f"s_and_b32 s41, s37, 1\ns_cmp_eq_u32 s41, 1\ns_cbranch_scc1 L_{P}_eup")
    for i in range(8):
        d = ACC + 4*i
        a(f"v_cvt_pk_bf16_f32 v{GH+2*i}, v{d}, v{d+1}\nv_cvt_pk_bf16_f32 v{GH+2*i+1}, v{d+2}, v{d+3}")
    a(f"s_branch L_{P}_ed")
    a(f"L_{P}_eup:")
    C1 = -2.0 * 0.7978845608028654 * 1.4426950408889634
    C2 = C1 * 0.044715
    a(f"v_mov_b32 v20, {hex(f32bits(C1))}\nv_mov_b32 v21, {hex(f32bits(C2))}\nv_mov_b32 v22, 0xffff0000")
    a("s_lshr_b32 s41, s37, 1\ns_add_u32 s41, s41, s29\ns_lshl_b32 s41, s41, 10\ns_add_u32 s41, s41, s40")
    for i in range(8):
        d = ACC + 4*i
        T = TMP + 16
        a(f"v_cvt_pk_bf16_f32 v{T}, v{d}, v{d+1}\nv_cvt_pk_bf16_f32 v{T+1}, v{d+2}, v{d+3}")
        for r in range(4):
            src_g = GH + 2*i + (r >> 1); src_u = T + (r >> 1)
            g = T + 4 + r; u = T + 8 + r; z = T + 12 + r
            if r & 1:
                a(f"v_and_b32 v{g}, v22, v{src_g}\nv_and_b32 v{u}, v22, v{src_u}")
            else:
                a(f"v_lshlrev_b32 v{g}, 16, v{src_g}\nv_lshlrev_b32 v{u}, 16, v{src_u}")
        for r in range(4):
            g = T + 4 + r; z = T + 12 + r
            a(f"v_mul_f32 v{z}, v{g}, v{g}\nv_fma_f32 v{z}, v{z}, v21, v20\nv_mul_f32 v{z}, v{z}, v{g}")
        for r in range(4):
            z = T + 12 + r
            a(f"v_exp_f32 v{z}, v{z}")
        for r in range(4):
            z = T + 12 + r
            a(f"v_add_f32 v{z}, 1.0, v{z}")
        for r in range(4):
            z = T + 12 + r
            a(f"v_rcp_f32 v{z}, v{z}")
        a("s_nop 0")
        for r in range(4):
            g = T + 4 + r; z = T + 12 + r
            a(f"v_mul_f32 v{z}, v{z}, v{g}")
        a(f"v_cvt_pk_bf16_f32 v{T+4}, v{T+12}, v{T+13}\nv_cvt_pk_bf16_f32 v{T+5}, v{T+14}, v{T+15}")
        a(f"v_lshlrev_b32 v{T+12}, 16, v{T+4}\nv_and_b32 v{T+13}, v22, v{T+4}\nv_lshlrev_b32 v{T+14}, 16, v{T+5}\nv_and_b32 v{T+15}, v22, v{T+5}")
        for r in range(4):
            a(f"v_mul_f32 v{T+12+r}, v{T+12+r}, v{T+8+r}")
        t, tt = divmod(i, 4)
        o = TMP + 4*tt + 2*t
        a(f"v_cvt_pk_bf16_f32 v{o}, v{T+12}, v{T+13}\nv_cvt_pk_bf16_f32 v{o+1}, v{T+14}, v{T+15}")
    for tt in range(4):
        a(f"s_add_u32 s42, s41, {tt*54*1024}")
        a(f"buffer_store_dwordx4 v[{TMP+4*tt}:{TMP+4*tt+3}], v8, s[8:11], s42 offen")
    a(f"L_{P}_ed:")
    a("s_barrier")
    a(f"s_add_u32 s41, s37, 3\ns_cmp_ge_u32 s41, s28\ns_cbranch_scc1 L_{P}_noissue")
    issue(34)
    a(f"L_{P}_noissue:")
    a("s_mov_b32 s41, s34\ns_mov_b32 s34, s35\ns_mov_b32 s35, s36\ns_mov_b32 s36, s41")
    a(f"s_add_u32 s37, s37, 1\ns_cmp_lt_u32 s37, s28\ns_cbranch_scc1 L_{P}_unit")
```

```python
import sys
from common import *
import k_prep, k_gemm1, k_chain, k_attn, k_final
mods = [k_prep, k_chain]
only = sys.argv[1:]
if "prof" in only: k_chain.PROF = True
for o in only:
    if o.startswith("sleep"): k_chain.SLEEP = int(o[5:])
if "slow" in only: k_chain.NEED = 33
for o in only:
    if o.startswith("rsl"): k_chain.RSL = int(o[3:])
a = Asm()
infos = []
for m in mods:
    infos.append(m.gen(a))
hdr = open("cdna_kernels/" + KN + ".s.ref").read().split("; Override launch")[0]
out = hdr
for name, grid, block, lds, _ in infos:
    out += f"; @launch kernel={name} grid=({grid},1,1) block=({block},1,1) lds={lds}\n"
out += '.amdgcn_target "amdgcn-amd-amdhsa--gfx950"\n.text\n' + a.text()
out += '.section .rodata,"a"\n' + "\n".join(i[4] for i in infos) + "\n"
open("gen/" + ([o[4:] for o in only if o.startswith("out=")] + ["out.s"])[0], "w").write(out)
print("bytes", len(out))
```

```python
from common import *
GRID = NSEG * H // 4
SCALE_LOG2E = (128 ** -0.5) * 1.4426950408889634
Q0 = 8
KX0 = 40
KM0 = 72
V0 = 88
SC = 140
PP = 160
OA = 172
T = 188

def f32bits(x):
    import struct
    return struct.unpack("<I", struct.pack("<f", x))[0]

def body(a):
    a("v_and_b32 v1, 15, v0\nv_lshrrev_b32 v2, 4, v0\nv_lshlrev_b32 v3, 4, v0\nv_lshlrev_b32 v4, 3, v0")
    a(f"s_lshl_b32 s18, s17, 13\ns_add_u32 s20, s18, {WS['QX']}\ns_add_u32 s21, s18, {WS['KX']}\ns_add_u32 s22, s18, {WS['VX']}")
    a(f"s_lshl_b32 s18, s17, 12\ns_add_u32 s23, s18, {WS['KM']}\ns_add_u32 s24, s18, {WS['VM']}")
    a("s_add_u32 s25, s20, 4096\ns_add_u32 s26, s21, 4096\ns_add_u32 s27, s22, 4096")
    for i in range(4):
        a(f"buffer_load_dwordx4 v[{KM0+4*i}:{KM0+4*i+3}], v3, s[8:11], s23 offen offset:{1024*i} sc1")
    for i in range(8):
        a(f"buffer_load_dwordx4 v[{Q0+4*i}:{Q0+4*i+3}], v3, s[8:11], s{20 if i < 4 else 25} offen offset:{1024*(i%4)} sc1")
    for i in range(8):
        a(f"buffer_load_dwordx4 v[{KX0+4*i}:{KX0+4*i+3}], v3, s[8:11], s{21 if i < 4 else 26} offen offset:{1024*(i%4)} sc1")
    for i in range(8):
        a(f"buffer_load_dwordx2 v[{V0+6*i}:{V0+6*i+1}], v4, s[8:11], s24 offen offset:{512*i} sc1")
        a(f"buffer_load_dwordx4 v[{V0+6*i+2}:{V0+6*i+5}], v3, s[8:11], s{22 if i < 4 else 27} offen offset:{1024*(i%4)} sc1")
    a(f"v_mov_b32 v{V0+48}, 0\nv_mov_b32 v{V0+49}, 0")
    a("v_cmp_gt_u32 s[28:29], 2, v2\nv_lshlrev_b32 v5, 2, v2")
    for r in range(4):
        a(f"v_add_u32 v6, {r}, v5\nv_cmp_le_u32 s[{30+2*r}:{31+2*r}], v6, v1")
    a("s_lshr_b32 s18, s17, 5\ns_lshl_b32 s18, s18, 18\ns_and_b32 s19, s17, 31\ns_lshl_b32 s19, s19, 12\ns_add_u32 s18, s18, s19")
    a(f"s_add_u32 s40, s18, {WS['OX']}\ns_add_u32 s41, s40, {128*1024}")
    a("s_waitcnt vmcnt(16)")
    def q(t, i): return f"v[{Q0+16*t+4*i}:{Q0+16*t+4*i+3}]"
    tiles = [(0, KM0), (0, KX0), (1, KM0), (1, KX0), (1, KX0+16)]
    for i in range(4):
        for ti, (t, kb) in enumerate(tiles):
            d = SC + 4*ti
            c = "0" if i == 0 else f"v[{d}:{d+3}]"
            a(f"v_mfma_f32_16x16x32_bf16 v[{d}:{d+3}], v[{kb+4*i}:{kb+4*i+3}], {q(t, i)}, {c}")
    a(f"v_mov_b32 v{T}, 0xff800000\nv_mov_b32 v{T+1}, {hex(f32bits(SCALE_LOG2E))}")
    a("s_nop 7\ns_nop 3")
    for ti in (0, 2):
        for r in range(4):
            a(f"v_cndmask_b32 v{SC+4*ti+r}, v{T}, v{SC+4*ti+r}, s[28:29]")
    for ti in (1, 4):
        for r in range(4):
            a(f"v_cndmask_b32 v{SC+4*ti+r}, v{T}, v{SC+4*ti+r}, s[{30+2*r}:{31+2*r}]")
    groups = [list(range(SC, SC+8)), list(range(SC+8, SC+20))]
    for gi, regs in enumerate(groups):
        m = T + 2 + 2*gi; m2 = m + 1
        a(f"v_max_f32 v{m}, v{regs[0]}, v{regs[1]}")
        for i in range(2, len(regs), 2):
            a(f"v_max3_f32 v{m}, v{m}, v{regs[i]}, v{regs[i+1]}")
        a(f"v_mov_b32 v{m2}, v{m}\ns_nop 1\nv_permlane16_swap_b32 v{m}, v{m2}\nv_max_f32 v{m}, v{m}, v{m2}")
        a(f"v_mov_b32 v{m2}, v{m}\ns_nop 1\nv_permlane32_swap_b32 v{m}, v{m2}\nv_max_f32 v{m}, v{m}, v{m2}")
        a(f"v_mul_f32 v{m}, v{m}, v{T+1}")
        for r in regs:
            a(f"v_fma_f32 v{r}, v{r}, v{T+1}, -v{m}")
        for r in regs:
            a(f"v_exp_f32 v{r}, v{r}")
        a("s_nop 0")
        a(f"v_add_f32 v{m}, v{regs[0]}, v{regs[1]}")
        for r in regs[2:]:
            a(f"v_add_f32 v{m}, v{m}, v{r}")
        a(f"v_mov_b32 v{m2}, v{m}\ns_nop 1\nv_permlane16_swap_b32 v{m}, v{m2}\nv_add_f32 v{m}, v{m}, v{m2}")
        a(f"v_mov_b32 v{m2}, v{m}\ns_nop 1\nv_permlane32_swap_b32 v{m}, v{m2}\nv_add_f32 v{m}, v{m}, v{m2}")
        a(f"v_rcp_f32 v{m}, v{m}\ns_nop 0")
        for r in regs:
            a(f"v_mul_f32 v{r}, v{r}, v{m}")
        pb = PP + 4*gi
        for i in range(0, len(regs), 2):
            a(f"v_cvt_pk_bf16_f32 v{pb+i//2}, v{regs[i]}, v{regs[i+1]}")
    a(f"v_mov_b32 v{PP+10}, 0\nv_mov_b32 v{PP+11}, 0")
    a("s_waitcnt vmcnt(0)")
    for t in range(2):
        for i in range(4):
            for h in range(2):
                et = 2*i + h
                d = OA + 4*h
                R = V0 + 6*et
                a(f"v_mfma_f32_16x16x32_bf16 v[{d}:{d+3}], v[{R}:{R+3}], v[{PP+4*t}:{PP+4*t+3}], 0")
                if t == 1:
                    a(f"v_mfma_f32_16x16x32_bf16 v[{d}:{d+3}], v[{R+4}:{R+7}], v[{PP+8}:{PP+11}], v[{d}:{d+3}]")
            a("s_nop 7\ns_nop 3")
            o = OA + 8 + 4*((t*4+i) % 2)
            a(f"v_cvt_pk_bf16_f32 v{o}, v{OA}, v{OA+1}\nv_cvt_pk_bf16_f32 v{o+1}, v{OA+2}, v{OA+3}")
            a(f"v_cvt_pk_bf16_f32 v{o+2}, v{OA+4}, v{OA+5}\nv_cvt_pk_bf16_f32 v{o+3}, v{OA+6}, v{OA+7}")
            a(f"buffer_store_dwordx4 v[{o}:{o+3}], v3, s[8:11], s{40+t} offen offset:{1024*i} sc1")
```

```python
from common import *
import k_gemm1, k_attn, k_final
GRID = 256
MSTR = 1344
L_MEM = 0
L_SP = L_MEM + 8 * MSTR
L_WP = L_SP + 12288
L_KV = L_WP + 20480
L_MISC = L_KV + 24576
L_WO = L_MISC + 512
LDS = L_WO + 81920
SCALE_LOG2E = (128 ** -0.5) * 1.4426950408889634

def f32bits(x):
    import struct
    return struct.unpack("<I", struct.pack("<f", x))[0]

PROF = False
RSL = 4
NEED = 32
SLEEP = 0
def gen(a):
    name = "chain_kernel"
    def stamp(i):
        if PROF:
            a(f"s_memtime s[{64+2*i}:{65+2*i}]")
    a.kernel_begin(name)
    a(f"s_cmp_ge_u32 s2, {GRID}\ns_cbranch_scc1 L_ch_done")
    a(f"s_load_dwordx2 s[4:5], s[0:1], {KA['ws']}\ns_load_dwordx2 s[6:7], s[0:1], {KA['dbg']}\ns_load_dwordx2 s[52:53], s[0:1], {KA['mem0']}")
    a("s_waitcnt lgkmcnt(0)")
    a.srd(8, 4, WS_BYTES)
    a.srd(12, 6, 256)
    a.srd(56, 52, 10240)
    a("v_lshrrev_b32 v1, 6, v0\ns_nop 0\nv_readfirstlane_b32 s16, v1\nv_and_b32 v0, 63, v0")
    if PROF:
        a("s_memrealtime s[74:75]\ns_add_u32 s76, s2, 2200\ns_lshl_b32 s76, s76, 2\ns_add_u32 s76, s76, " + str(WS_BYTES - 32768) + "\ns_waitcnt lgkmcnt(0)")
        a("v_mov_b32 v36, 0\nv_mov_b32 v37, s74\ns_mov_b64 exec, 1\nbuffer_store_dword v37, v36, s[8:11], s76 offen\ns_mov_b64 exec, -1")
    a("s_getreg_b32 s34, hwreg(HW_REG_XCC_ID)\ns_and_b32 s34, s34, 15")
    a("s_cmp_lg_u32 s16, 0\ns_cbranch_scc1 L_ch_tk")
    a("s_mov_b64 exec, 1\nv_mov_b32 v3, s34\nv_lshlrev_b32 v3, 2, v3\nv_mov_b32 v4, 1")
    a("buffer_atomic_add v4, v3, s[12:15], 0 offen sc0")
    a(f"s_lshl_b32 s18, s2, 2\ns_add_u32 s18, s18, {WS['FLAGS']+5120}\nv_mov_b32 v5, s34\nv_mov_b32 v6, 0\nbuffer_store_dword v5, v6, s[8:11], s18 offen sc1")
    a("s_waitcnt vmcnt(0)")
    a(f"v_mov_b32 v3, {L_MISC}\nds_write_b32 v3, v4\ns_waitcnt lgkmcnt(0)\ns_mov_b64 exec, -1")
    a("L_ch_tk:\ns_barrier")
    a(f"v_mov_b32 v3, {L_MISC}\nds_read_b32 v4, v3\ns_waitcnt lgkmcnt(0)\nv_readfirstlane_b32 s35, v4\ns_mov_b32 s30, s2\ns_barrier")
    a("s_mov_b32 s63, 0\ns_mov_b32 s32, 0")
    a("s_cmp_lt_u32 s34, 2\ns_cselect_b32 s31, 1, 0\ns_cmp_lt_u32 s35, 32\ns_cselect_b32 s18, 1, 0\ns_and_b32 s31, s31, s18")
    a("s_cmp_eq_u32 s31, 1\ns_cbranch_scc1 L_ch_setup")
    a("s_cmp_lt_u32 s30, 64\ns_cbranch_scc1 L_ch_censusB")
    a("s_branch L_ch_helper")
    a("L_ch_setup:")
    a("s_lshr_b32 s36, s35, 1\ns_lshl_b32 s18, s34, 4\ns_add_u32 s36, s36, s18")
    a("s_and_b32 s37, s35, 1")
    a("s_lshr_b32 s38, s35, 3\ns_and_b32 s39, s35, 7")
    a("s_lshl_b32 s40, s34, 2\ns_add_u32 s40, s40, s38")
    a("v_and_b32 v1, 15, v0\nv_lshrrev_b32 v2, 4, v0")
    a("v_cmp_gt_u32 s[20:21], 8, v1\nv_cmp_gt_u32 s[22:23], 8, v0\nv_cmp_gt_u32 s[24:25], 32, v0")
    a("v_cmp_eq_u32 s[26:27], s16, v2\ns_nop 1\ns_and_b64 s[26:27], s[26:27], s[20:21]")
    a("v_lshlrev_b32 v8, 4, v0")
    a("s_lshl_b32 s18, s36, 3\ns_lshl_b32 s19, s16, 1\ns_add_u32 s18, s18, s19\ns_mul_i32 s18, s18, 20480")
    a(f"s_add_u32 s41, s18, {WS['WQF']}\ns_add_u32 s42, s18, {WS['WKF']}")
    a("s_lshl_b32 s18, s36, 3\ns_lshl_b32 s19, s37, 2\ns_add_u32 s18, s18, s19\ns_add_u32 s18, s18, s16\ns_mul_i32 s18, s18, 20480")
    a(f"s_add_u32 s43, s18, {WS['WVF']}")
    def wload(dst, sbase, nfr, first):
        for f in range(nfr):
            blk, rem = divmod(first + f, 4)
            a(f"s_add_u32 s44, s{sbase}, {blk*4096}")
            a(f"buffer_load_dwordx4 {dst(f)}, v8, s[8:11], s44 offen offset:{rem*1024}")
    wload(lambda f: f"a[{4*f}:{4*f+3}]", 41, 40, 0)
    a("s_waitcnt vmcnt(20)")
    wload(lambda f: f"a[{160+4*f}:{163+4*f}]", 42, 20, 0)
    a("s_waitcnt vmcnt(20)")
    wload(lambda f: f"v[{176+4*f}:{179+4*f}]", 42, 20, 20)
    a("s_waitcnt vmcnt(20)")
    wload(lambda f: f"v[{96+4*f}:{99+4*f}]", 43, 20, 0)
    a("s_mul_i32 s18, s39, 5\ns_lshl_b32 s18, s18, 7\ns_lshl_b32 s19, s40, 4\ns_add_u32 s18, s18, s19\ns_lshl_b32 s19, s16, 2\ns_add_u32 s18, s18, s19\ns_lshl_b32 s18, s18, 10")
    a(f"s_add_u32 s44, s18, {WS['WOF']}")
    a("s_lshl_b32 s45, s16, 12")
    for t in range(5):
        a(f"s_add_u32 s46, s44, {t*128*1024}\ns_add_u32 s47, s45, {L_WO + t*16384}\ns_mov_b32 m0, s47\ns_nop 0")
        for k in range(4):
            a(f"buffer_load_dwordx4 v8, s[8:11], s46 offen offset:{k*1024} lds")
    a("s_mul_i32 s18, s16, 2560\nv_add_u32 v3, s18, v8")
    for i in range(3):
        a(f"v_add_u32 v24, {1024*i}, v8\nv_mov_b32 v25, 1280\nv_cmp_le_u32 vcc, v25, v24\ns_nop 1")
        a(f"v_mov_b32 v26, {MSTR-1280}\nv_cndmask_b32 v26, 0, v26, vcc\nv_add_u32 v24, v24, v26")
        a(f"s_mul_i32 s18, s16, {2*MSTR}\ns_add_u32 s18, s18, {L_MEM}\nv_add_u32 v{4+i}, s18, v24")
    a(f"v_and_b32 v24, 7, v1\nv_mul_u32_u24 v24, {MSTR}, v24\nv_lshlrev_b32 v25, 4, v2\nv_add_u32 v7, v24, v25\nv_add_u32 v7, {L_MEM}, v7")
    a(f"s_lshl_b32 s18, s16, 12\ns_add_u32 s18, s18, {L_WO}\nv_add_u32 v9, s18, v8\nv_add_u32 v10, {3*16384}, v9")
    a("s_lshl_b32 s18, s39, 1\ns_lshr_b32 s19, s16, 1\ns_add_u32 s18, s18, s19\ns_lshl_b32 s18, s18, 9")
    a("s_and_b32 s19, s16, 1\ns_lshl_b32 s19, s19, 3\ns_add_u32 s18, s18, s19")
    a("v_lshlrev_b32 v24, 6, v1\nv_lshlrev_b32 v25, 4, v2\nv_add3_u32 v11, v24, v25, s18")
    a("v_and_b32 v24, 7, v1\nv_lshlrev_b32 v24, 6, v24\ns_lshl_b32 s18, s16, 11\nv_add3_u32 v12, v24, v25, s18")
    a("v_lshlrev_b32 v24, 7, v2\nv_and_b32 v25, 7, v1\nv_lshlrev_b32 v25, 4, v25\nv_add_u32 v24, v24, v25\nv_lshrrev_b32 v25, 3, v1")
    a(f"s_mul_i32 s18, s16, 1536\ns_add_u32 s18, s18, {L_SP}\nv_add_u32 v13, s18, v24")
    a(f"v_mul_u32_u24 v26, 1536, v25\nv_add_u32 v26, v26, v24\nv_add_u32 v94, {L_SP}, v26")
    a(f"s_mul_i32 s18, s16, 2560\ns_add_u32 s18, s18, {L_WP}\nv_add_u32 v20, s18, v24")
    a(f"v_mul_u32_u24 v26, 2560, v25\nv_add_u32 v26, v26, v24\ns_lshl_b32 s18, s16, 9\ns_add_u32 s18, s18, {L_WP}\nv_add_u32 v21, s18, v26\nv_add_u32 v95, {L_WP+2048}, v26")
    a("s_mul_i32 s18, s39, 5\ns_add_u32 s19, s18, s16\ns_lshl_b32 s19, s19, 2\nv_add_u32 v24, s19, v2\nv_lshlrev_b32 v24, 9, v24")
    a("s_lshl_b32 s19, s38, 7\nv_lshlrev_b32 v25, 4, v1\nv_add3_u32 v14, v24, v25, s19")
    a("s_add_u32 s18, s18, 4\ns_lshl_b32 s18, s18, 2\nv_add_u32 v24, s18, v2\nv_lshlrev_b32 v24, 9, v24\nv_add3_u32 v15, v24, v25, s19")
    a(f"s_mul_i32 s18, s34, {PSZ}\ns_add_u32 s18, s18, {WS['PL']}")
    a(f"s_xor_b32 s19, s34, 1\ns_mul_i32 s19, s19, {PSZ}\ns_add_u32 s19, s19, {WS['PR']}")
    a("v_mov_b32 v24, s19\nv_mov_b32 v25, s18\nv_cndmask_b32 v24, v24, v25, s[24:25]")
    a("v_and_b32 v25, 31, v0\nv_lshlrev_b32 v25, 4, v25\nv_add_u32 v24, v24, v25")
    a("s_lshl_b32 s18, s35, 2\ns_add_u32 s18, s18, s16\ns_lshl_b32 s19, s18, 9\nv_add_u32 v16, s19, v24")
    a("s_add_u32 s19, s35, 128\ns_lshl_b32 s19, s19, 9\nv_add_u32 v17, s19, v24")
    a("v_mul_u32_u24 v24, 1280, v0\ns_lshl_b32 s18, s18, 3\nv_add_u32 v18, s18, v24")
    a("s_add_u32 s19, s35, 128\ns_lshl_b32 s19, s19, 3\nv_add_u32 v19, s19, v24")
    a("s_lshl_b32 s18, s37, 2\ns_add_u32 s18, s18, s16\ns_lshl_b32 s61, s18, 10")
    a("s_lshl_b32 s19, s18, 9\nv_lshlrev_b32 v24, 3, v0\nv_add_u32 v23, s19, v24")
    a("s_lshl_b32 s19, s16, 10\nv_add_u32 v22, s19, v8")
    a(f"s_lshl_b32 s18, s36, 13\ns_add_u32 s47, s18, {WS['KX']}\ns_add_u32 s48, s18, {WS['VX']}\ns_add_u32 s48, s48, s61")
    a(f"s_lshl_b32 s18, s36, 12\ns_add_u32 s49, s18, {WS['KM']}\ns_add_u32 s50, s18, {WS['VM']}")
    a(f"s_mul_i32 s41, s34, {65*10240}\ns_add_u32 s41, s41, {WS['MEMB']}")
    a(f"s_lshl_b32 s42, s40, 13\ns_add_u32 s42, s42, {WS['OEX']}")
    a("s_mov_b32 s17, 0\ns_mov_b32 s51, 0")
    a(f"s_mul_i32 s62, s16, 3072\ns_add_u32 s62, s62, {L_KV}")
    def kv_prefetch():
        a(f"s_and_b32 s18, s54, 1\ns_mul_i32 s18, s18, 12288\ns_add_u32 s18, s18, s62\ns_mov_b32 m0, s18\ns_add_u32 s19, s47, 3072\ns_nop 0")
        a("buffer_load_dwordx4 v22, s[8:11], s47 offen sc1 lds\nbuffer_load_dwordx4 v22, s[8:11], s19 offen offset:1024 sc1 lds")
        a("s_sub_u32 s19, s48, 2048\nbuffer_load_dwordx4 v8, s[8:11], s19 offen offset:2048 sc1 lds")
    a("v_mov_b32 v1, v94\nv_mov_b32 v2, v95")
    a(f"s_lshl_b32 s33, s34, 5\ns_add_u32 s33, s33, s35\ns_lshl_b32 s33, s33, 2\ns_add_u32 s33, s33, {WS['FLAGS']+2048}")
    a("s_mov_b32 s54, 0")
    a(f"s_lshl_b32 s18, s36, 3\ns_add_u32 s18, s18, {WS['FLAGS']+6144}")
    a("L_ch_fl0:")
    a("v_mov_b32 v36, 0\nbuffer_load_dwordx2 v[38:39], v36, s[8:11], s18 offen sc1\nbuffer_load_dwordx2 v[40:41], v36, s[8:11], s18 offen offset:256 sc1\ns_waitcnt vmcnt(0)")
    a("v_or_b32 v37, v38, v39\nv_or3_b32 v37, v37, v40, v41\ns_nop 0\nv_readfirstlane_b32 s19, v37\ns_cmp_lg_u32 s19, 0\ns_cbranch_scc1 L_ch_fl0")
    kv_prefetch()
    a("s_waitcnt vmcnt(0)\ns_barrier")
    if PROF:
        a("s_memrealtime s[74:75]\ns_lshl_b32 s76, s34, 5\ns_add_u32 s76, s76, s35\ns_add_u32 s76, s76, 2100\ns_lshl_b32 s76, s76, 2\ns_add_u32 s76, s76, " + str(WS_BYTES - 32768) + "\ns_waitcnt lgkmcnt(0)")
        a("v_mov_b32 v36, 0\nv_mov_b32 v37, s74\ns_mov_b64 exec, 1\nbuffer_store_dword v37, v36, s[8:11], s76 offen\ns_mov_b64 exec, -1")
    a("s_cmp_eq_u32 s32, 1\ns_cbranch_scc1 L_ch_step")
    def census(tag, setup_done):
        a(f"L_ch_census{tag}:")
        a(f"s_mov_b32 s18, {WS['FLAGS']+5120}\nv_lshlrev_b32 v24, 4, v0\nbuffer_load_dwordx4 v[28:31], v24, s[8:11], s18 offen sc1\ns_waitcnt vmcnt(0)")
        a("v_max_u32 v25, v28, v29\nv_max3_u32 v25, v25, v30, v31\nv_cmp_eq_u32 vcc, -1, v25")
        a(f"s_cbranch_vccz L_ch_cen2{tag}\ns_sleep 4\ns_branch L_ch_census{tag}")
        a(f"L_ch_cen2{tag}:")
        a("s_mov_b32 s18, 0\ns_mov_b32 s19, 0")
        for r in range(4):
            a(f"v_cmp_eq_u32 vcc, 0, v{28+r}\ns_nop 3\ns_bcnt1_i32_b64 s28, vcc\ns_add_u32 s18, s18, s28")
            a(f"v_cmp_eq_u32 vcc, 1, v{28+r}\ns_nop 3\ns_bcnt1_i32_b64 s28, vcc\ns_add_u32 s19, s19, s28")
        a("s_mov_b32 s32, 1\ns_min_u32 s18, s18, s19")
        a(f"s_cmp_ge_u32 s18, {NEED}\ns_cbranch_scc1 {'L_ch_step' if setup_done else 'L_ch_helper'}")
        a("s_cmp_lt_u32 s30, 64\ns_cbranch_scc0 L_ch_helper")
        a("s_mov_b32 s63, 1\ns_lshr_b32 s34, s30, 5\ns_and_b32 s35, s30, 31\ns_branch L_ch_setup")
    census("A", True)
    census("B", False)
    def st(ins):
        l1 = a.label("chs"); l2 = a.label("chs")
        a(f"s_cmp_eq_u32 s63, 0\ns_cbranch_scc1 {l1}\n{ins} sc1\ns_branch {l2}\n{l1}:\n{ins}\n{l2}:")

    a("L_ch_step:")
    if PROF:
        a("s_cmp_lg_u32 s17, 11\ns_cbranch_scc1 L_ch_noprof")
        a("s_lshl_b32 s18, s34, 5\ns_add_u32 s18, s18, s35\ns_lshl_b32 s18, s18, 2\ns_add_u32 s18, s18, s16\ns_lshl_b32 s18, s18, 6")
        a(f"s_add_u32 s18, s18, {WS_BYTES - 65536}")
        a("s_waitcnt lgkmcnt(0)\ns_mov_b64 exec, 1\nv_mov_b32 v24, 0")
        for i in range(12):
            a(f"v_mov_b32 v25, s{64+2*i}\nbuffer_store_dword v25, v24, s[8:11], s18 offen offset:{4*i}")
        for i in range(3):
            a(f"v_mov_b32 v25, s{90+i}\nbuffer_store_dword v25, v24, s[8:11], s18 offen offset:{48+4*i}")
        a("s_mov_b64 exec, -1\nL_ch_noprof:\ns_mov_b32 s90, 0\ns_mov_b32 s91, 0\ns_mov_b32 s92, 0")
    stamp(0)
    a("s_branch L_ch_gpoll_g\nL_ch_gpoll:\n" + (f"s_sleep {SLEEP}\n" if SLEEP else "") + "L_ch_gpoll_g:" + ("\ns_add_u32 s90, s90, 1" if PROF else ""))
    a("buffer_load_dwordx4 v[24:27], v3, s[56:59], s51 offen sc1\nbuffer_load_dwordx4 v[28:31], v3, s[56:59], s51 offen offset:1024 sc1")
    a("s_mov_b64 exec, s[24:25]\nbuffer_load_dwordx4 v[32:35], v3, s[56:59], s51 offen offset:2048 sc1\ns_mov_b64 exec, -1")
    a("s_waitcnt vmcnt(0)")
    a("v_max_u32 v36, v24, v25\nv_max3_u32 v36, v36, v26, v27\nv_max3_u32 v36, v36, v28, v29\nv_max3_u32 v36, v36, v30, v31")
    a("v_max_u32 v37, v32, v33\nv_max3_u32 v37, v37, v34, v35\nv_cndmask_b32 v37, 0, v37, s[24:25]\nv_max_u32 v36, v36, v37")
    a("v_cmp_eq_u32 vcc, -1, v36\ns_cbranch_vccnz L_ch_gpoll")
    stamp(1)
    a("ds_write_b128 v4, v[24:27]\nds_write_b128 v5, v[28:31]")
    a("s_mov_b64 exec, s[24:25]\nds_write_b128 v6, v[32:35]\ns_mov_b64 exec, -1")
    a(f"s_cmp_ge_u32 s17, {NSEG-2}\ns_cbranch_scc1 L_ch_nopf")
    a(f"s_add_u32 s47, s47, {H*8192}\ns_add_u32 s48, s48, {H*8192}\ns_add_u32 s54, s17, 1")
    a("s_cmp_lg_u32 s54, 4\ns_cbranch_scc1 L_ch_fl4ok")
    a(f"s_lshl_b32 s18, s36, 3\ns_add_u32 s18, s18, {WS['FLAGS']+6144+512}")
    a("L_ch_fl4:")
    a("v_mov_b32 v36, 0\nbuffer_load_dwordx2 v[38:39], v36, s[8:11], s18 offen sc1\nbuffer_load_dwordx2 v[40:41], v36, s[8:11], s18 offen offset:256 sc1\ns_waitcnt vmcnt(0)")
    a("v_or_b32 v37, v38, v39\nv_or3_b32 v37, v37, v40, v41\ns_nop 0\nv_readfirstlane_b32 s19, v37\ns_cmp_lg_u32 s19, 0\ns_cbranch_scc1 L_ch_fl4")
    a("L_ch_fl4ok:")
    a("s_and_b32 s18, s54, 7\ns_cmp_lg_u32 s18, 0\ns_cbranch_scc1 L_ch_flok")
    a(f"s_lshl_b32 s18, s54, 2\ns_lshr_b32 s19, s36, 1\ns_add_u32 s18, s18, s19\ns_lshl_b32 s18, s18, 2\ns_add_u32 s18, s18, {WS['FLAGS']}")
    a("L_ch_fl:")
    a("v_mov_b32 v36, 0\nbuffer_load_dword v37, v36, s[8:11], s18 offen sc1\nbuffer_load_dword v38, v36, s[8:11], s18 offen offset:64 sc1\ns_waitcnt vmcnt(0)")
    a("v_or_b32 v37, v37, v38\ns_nop 0\nv_readfirstlane_b32 s19, v37\ns_cmp_lg_u32 s19, 0\ns_cbranch_scc1 L_ch_fl")
    a("L_ch_flok:")
    kv_prefetch()
    a("L_ch_nopf:")
    a("s_lshl_b32 s18, s16, 11\nv_lshlrev_b32 v90, 5, v0\nv_add_u32 v90, s18, v90")
    a(f"s_mov_b32 m0, {L_MISC+256}\ns_nop 0\nbuffer_load_dword v90, s[8:11], s42 offen sc1 lds")
    a("s_mov_b32 s56, s8\ns_mov_b32 s57, s9\ns_mov_b32 s58, s10")
    a("s_lshr_b32 s60, s17, 1\ns_and_b32 s60, s60, 1")
    a(f"s_and_b32 s18, s17, 1\ns_mul_i32 s46, s18, {2*PSZ}")
    a(f"s_mul_i32 s19, s18, 12288\ns_add_u32 s19, s19, s62\nv_add_u32 v88, s19, v8")
    a(f"s_mul_i32 s18, s34, {PSZ}\ns_add_u32 s18, s18, s46\ns_add_u32 s43, s18, {WS['PL']}\ns_add_u32 s44, s18, {WS['PR']}")
    a("s_waitcnt lgkmcnt(0)\ns_barrier")
    stamp(2)
    a("s_cmp_lg_u32 s16, 0\ns_cbranch_scc1 L_ch_nopr")
    a("s_mov_b64 exec, 1\nv_mov_b32 v36, 0\nv_mov_b32 v37, s17\nbuffer_store_dword v37, v36, s[8:11], s33 offen sc1\ns_mov_b64 exec, -1")
    a("L_ch_nopr:")
    BB = [44, 48, 52, 56]
    for j in range(3):
        a(f"ds_read_b128 v[{BB[j]}:{BB[j]+3}], v7 offset:{64*j}")
    a("ds_read_b128 v[60:63], v88\nds_read_b128 v[64:67], v88 offset:1024\nds_read_b128 v[82:85], v88 offset:2048")
    for ks in range(20):
        if ks + 3 < 20:
            b = BB[(ks + 3) % 4]
            a(f"ds_read_b128 v[{b}:{b+3}], v7 offset:{64*(ks+3)}")
            a(f"s_waitcnt lgkmcnt({6 if ks < 3 else 3})" if ks != 2 else "s_waitcnt lgkmcnt(3)")
        else:
            a(f"s_waitcnt lgkmcnt({19-ks})")
        b = BB[ks % 4]
        c = (lambda d: "0") if ks == 0 else (lambda d: f"v[{d}:{d+3}]")
        a(f"v_mfma_f32_16x16x32_bf16 v[24:27], a[{4*ks}:{4*ks+3}], v[{b}:{b+3}], {c(24)}")
        a(f"v_mfma_f32_16x16x32_bf16 v[28:31], a[{80+4*ks}:{83+4*ks}], v[{b}:{b+3}], {c(28)}")
        a(f"v_mfma_f32_16x16x32_bf16 v[32:35], a[{160+4*ks}:{163+4*ks}], v[{b}:{b+3}], {c(32)}")
        a(f"v_mfma_f32_16x16x32_bf16 v[36:39], v[{176+4*ks}:{179+4*ks}], v[{b}:{b+3}], {c(36)}")
        a(f"v_mfma_f32_16x16x32_bf16 v[40:43], v[{b}:{b+3}], v[{96+4*ks}:{99+4*ks}], {c(40)}")
    a("s_nop 3")
    for t in range(4):
        if t == 3:
            a("s_nop 3")
        a(f"v_cvt_pk_bf16_f32 v{44+2*t}, v{24+4*t}, v{25+4*t}\nv_cvt_pk_bf16_f32 v{45+2*t}, v{26+4*t}, v{27+4*t}")
    stamp(3)
    a(f"s_cmp_eq_u32 s17, {NSEG-1}\ns_cbranch_scc1 L_ch_last")
    a("v_mfma_f32_16x16x32_bf16 v[72:75], v[60:63], v[44:47], 0")
    a("v_mfma_f32_16x16x32_bf16 v[76:79], v[64:67], v[44:47], 0")
    a("v_mfma_f32_16x16x32_bf16 v[68:71], v[48:51], v[44:47], 0")
    a("s_cmp_lg_u32 s37, 0\ns_cbranch_scc1 L_ch_nokm")
    a("buffer_store_dwordx4 v[48:51], v22, s[8:11], s49 offen sc1")
    a("L_ch_nokm:")
    a("v_cvt_pk_bf16_f32 v80, v40, v41\nv_cvt_pk_bf16_f32 v81, v42, v43")
    a(f"v_mov_b32 v36, 0xff800000\nv_mov_b32 v39, {hex(f32bits(SCALE_LOG2E))}\nv_mov_b32 v66, 0\nv_mov_b32 v67, 0\nv_mov_b32 v86, 0\nv_mov_b32 v87, 0")
    a("s_mov_b64 exec, s[20:21]")
    a("ds_write_b128 v13, v[72:75] offset:512\nds_write_b128 v13, v[76:79] offset:1024\nds_write_b128 v13, v[68:71]")
    a("s_mov_b64 exec, -1")
    a("s_waitcnt lgkmcnt(0)\ns_barrier")
    stamp(4)
    for t in range(3):
        a(f"ds_read_b128 v[{24+4*t}:{27+4*t}], v1 offset:{512*t}\nds_read_b128 v[{40+4*t}:{43+4*t}], v1 offset:{3072+512*t}")
    for t in range(3):
        a(f"s_waitcnt lgkmcnt({4-2*t})")
        for r in range(4):
            a(f"v_add_f32 v{40+4*t+r}, v{24+4*t+r}, v{40+4*t+r}")
    a("s_nop 1")
    for i in range(12):
        a(f"v_add_f32 v{24+i}, v{40+i}, v{40+i} row_ror:8")
    sc = list(range(24, 36))
    P = a
    for r in range(4):
        P(f"v_cndmask_b32 v{24+r}, v36, v{24+r}, s[24:25]")
    P(f"v_max3_f32 v37, v{sc[4]}, v{sc[5]}, v{sc[6]}\nv_max3_f32 v38, v{sc[7]}, v{sc[8]}, v{sc[9]}")
    P(f"v_max3_f32 v37, v37, v{sc[10]}, v{sc[11]}\nv_max3_f32 v38, v38, v{sc[0]}, v{sc[1]}")
    P(f"v_max3_f32 v37, v37, v{sc[2]}, v{sc[3]}\nv_max_f32 v37, v37, v38")
    P("v_mov_b32 v38, v37\ns_nop 1\nv_permlane16_swap_b32 v37, v38")
    P("v_max_f32 v37, v37, v38")
    P("v_mov_b32 v38, v37\ns_nop 1\nv_permlane32_swap_b32 v37, v38")
    P("v_max_f32 v37, v37, v38")
    P("v_mul_f32 v37, v37, v39")
    for i in range(12):
        P(f"v_fma_f32 v{sc[i]}, v{sc[i]}, v39, -v37")
    for i in range(12):
        P(f"v_exp_f32 v{sc[i]}, v{sc[i]}")
    P(f"v_add_f32 v37, v{sc[0]}, v{sc[1]}\nv_add_f32 v38, v{sc[2]}, v{sc[3]}")
    for i in range(4, 12, 2):
        P(f"v_add_f32 v37, v37, v{sc[i]}\nv_add_f32 v38, v38, v{sc[i+1]}")
    P("v_add_f32 v37, v37, v38")
    P("v_mov_b32 v38, v37\ns_nop 1\nv_permlane16_swap_b32 v37, v38")
    P("v_add_f32 v37, v37, v38")
    P("v_mov_b32 v38, v37\ns_nop 1\nv_permlane32_swap_b32 v37, v38")
    P("v_add_f32 v37, v37, v38")
    P("v_rcp_f32 v37, v37\ns_nop 0")
    for i in range(12):
        P(f"v_mul_f32 v{sc[i]}, v{sc[i]}, v37")
    P("v_cvt_pk_bf16_f32 v64, v32, v33\nv_cvt_pk_bf16_f32 v65, v34, v35")
    P("v_cvt_pk_bf16_f32 v60, v24, v25\nv_cvt_pk_bf16_f32 v61, v26, v27")
    P("v_cvt_pk_bf16_f32 v62, v28, v29\nv_cvt_pk_bf16_f32 v63, v30, v31")
    a("s_nop 1\nv_mfma_f32_16x16x32_bf16 v[24:27], v[84:87], v[64:67], 0")
    a("v_mfma_f32_16x16x32_bf16 v[24:27], v[80:83], v[60:63], v[24:27]")
    def areg(f):
        if f < 5: return f"v[{60+4*f}:{63+4*f}]"
        if f < 8: return f"v[{84+4*(f-5)}:{87+4*(f-5)}]"
        return f"a[{240+4*(f-8)}:{243+4*(f-8)}]"
    def aread(f, dst):
        k, t = divmod(f, 5)
        a(f"ds_read_b128 {dst}, v{9 if t < 3 else 10} offset:{(t % 3)*16384 + k*1024}")
    for f in range(8, 12):
        aread(f, areg(f))
    a("s_nop 6")
    a("v_cvt_pk_bf16_f32 v28, v24, v25\nv_cvt_pk_bf16_f32 v29, v26, v27")
    a("v_min_u32 v28, -2, v28\nv_min_u32 v29, -2, v29")
    a("s_mov_b64 exec, s[20:21]")
    st("buffer_store_dwordx2 v[28:29], v11, s[8:11], s42 offen")
    a("s_mov_b64 exec, -1")
    stamp(5)
    for f in range(8):
        aread(f, areg(f))
    a("s_branch L_ch_opoll_g\nL_ch_opoll:\n" + (f"s_sleep {SLEEP}\n" if SLEEP else "") + "L_ch_opoll_g:" + ("\ns_add_u32 s91, s91, 1" if PROF else ""))
    for k in range(4):
        a(f"buffer_load_dwordx4 v[{24+4*k}:{27+4*k}], v12, s[8:11], s42 offen offset:{512*k} sc1")
    a("s_waitcnt vmcnt(0)")
    a("v_max_u32 v40, v24, v25\nv_max3_u32 v40, v40, v26, v27")
    for k in range(1, 4):
        a(f"v_max3_u32 v40, v40, v{24+4*k}, v{25+4*k}\nv_max3_u32 v40, v40, v{26+4*k}, v{27+4*k}")
    a("v_cmp_eq_u32 vcc, -1, v40\ns_cbranch_vccnz L_ch_opoll")
    stamp(6)
    a("buffer_store_dwordx2 v[80:81], v23, s[8:11], s50 offen sc1")
    a("s_waitcnt lgkmcnt(0)")
    late = {}
    for f in range(20):
        k, t = divmod(f, 5)
        d = 40 + 4*t
        src = areg(f) if f < 12 else late[f]
        if f >= 12:
            a(f"s_waitcnt lgkmcnt({19-f})")
        a(f"v_mfma_f32_16x16x32_bf16 v[{d}:{d+3}], {src}, v[{24+4*k}:{27+4*k}], {'0' if k == 0 else f'v[{d}:{d+3}]'}")
        if 1 <= f <= 8:
            late[11 + f] = areg(f - 1)
            aread(11 + f, areg(f - 1))
    a("v_mov_b32 v92, s60\ns_mov_b64 exec, s[20:21]\ns_nop 2")
    for t in range(5):
        if t == 4:
            a("s_nop 4")
        a(f"ds_write_b128 v20, v[{40+4*t}:{43+4*t}] offset:{512*t}")
    a("s_mov_b64 exec, -1")
    a("s_waitcnt lgkmcnt(0)\ns_barrier")
    stamp(7)
    a("ds_read_b128 v[28:31], v21\nds_read_b128 v[32:35], v21 offset:5120\nds_read_b128 v[44:47], v2\nds_read_b128 v[48:51], v2 offset:5120")
    a("s_waitcnt lgkmcnt(2)")
    for r in range(4):
        a(f"v_add_f32 v{28+r}, v{28+r}, v{32+r}")
    a("s_nop 1")
    for r in range(4):
        a(f"v_add_f32 v{24+r}, v{28+r}, v{28+r} row_ror:8")
    for r in range(4):
        a(f"v_and_or_b32 v{24+r}, v{24+r}, -2, v92")
    a("s_mov_b64 exec, s[20:21]")
    a("buffer_store_dwordx4 v[24:27], v14, s[8:11], s44 offen sc1")
    st("buffer_store_dwordx4 v[24:27], v14, s[8:11], s43 offen")
    a("s_mov_b64 exec, -1")
    a("s_waitcnt lgkmcnt(0)")
    for r in range(4):
        a(f"v_add_f32 v{44+r}, v{44+r}, v{48+r}")
    a("s_nop 1")
    for r in range(4):
        a(f"v_add_f32 v{40+r}, v{44+r}, v{44+r} row_ror:8")
    for r in range(4):
        a(f"v_and_or_b32 v{40+r}, v{40+r}, -2, v92")
    a("s_mov_b64 exec, s[26:27]")
    a("buffer_store_dwordx4 v[40:43], v15, s[8:11], s44 offen sc1")
    st("buffer_store_dwordx4 v[40:43], v15, s[8:11], s43 offen")
    a("s_mov_b64 exec, -1")
    stamp(8)
    def check(regs):
        a(f"v_xor_b32 v60, v{regs[0]}, v92")
        for r in regs[1:]:
            a(f"v_xor_b32 v61, v{r}, v92\nv_or_b32 v60, v60, v61")
        a("v_and_b32 v60, 1, v60\nv_cmp_ne_u32 vcc, 0, v60")
    def tree(src, n):
        for j in range(n):
            a(f"v_add_f32 v{24+j}, v{src+j}, v{src+j} row_ror:8")
        for j in range(n):
            a(f"v_mov_b32 v{32+j}, v{24+j}")
        a("s_nop 1")
        for j in range(n):
            a(f"v_permlane16_swap_b32 v{24+j}, v{32+j}")
        for j in range(n):
            a(f"v_add_f32 v{24+j}, v{24+j}, v{32+j}")
        for j in range(n):
            a(f"v_mov_b32 v{32+j}, v{24+j}")
        a("s_nop 1")
        for j in range(n):
            a(f"v_permlane32_swap_b32 v{24+j}, v{32+j}")
        for j in range(n):
            a(f"v_add_f32 v{24+j}, v{24+j}, v{32+j}")
        for j in range(0, n, 2):
            a(f"v_cvt_pk_bf16_f32 v{40+j//2}, v{24+j}, v{25+j}")
        for j in range(0, n, 2):
            a(f"v_min_u32 v{40+j//2}, -2, v{40+j//2}")
    a("s_add_u32 s51, s41, 10240\ns_mov_b32 s41, s51")
    a("s_cmp_lg_u32 s16, 0\ns_cbranch_scc1 L_ch_rB")
    NS = 3
    for path, nl in (("A", 2), ("B", 1)):
        if path == "B":
            a("L_ch_rB:")
        base = [62 + 8*i for i in range(NS)]
        def issue(i):
            a(f"buffer_load_dwordx4 v[{base[i]}:{base[i]+3}], v16, s[8:11], s46 offen sc1")
            if nl == 2:
                a(f"buffer_load_dwordx4 v[{base[i]+4}:{base[i]+7}], v17, s[8:11], s46 offen sc1")
        for i in range(NS):
            issue(i)
            if i < NS - 1:
                a(f"s_sleep {RSL}")
        a(f"L_ch_rp{path}:")
        for i in range(NS):
            if PROF:
                a("s_add_u32 s92, s92, 1")
            a(f"s_waitcnt vmcnt({(NS-1)*nl})")
            check(list(range(base[i], base[i] + 4*nl)))
            a(f"s_cbranch_vccz L_ch_rd{path}{i}")
            issue(i)
        a(f"s_branch L_ch_rp{path}")
        for i in range(NS):
            a(f"L_ch_rd{path}{i}:")
            stamp(9)
            tree(base[i], 4*nl)
            a(f"s_branch L_ch_rpub{path}")
        a(f"L_ch_rpub{path}:")
        a("s_mov_b64 exec, s[22:23]")
        st("buffer_store_dwordx2 v[40:41], v18, s[8:11], s51 offen")
        if nl == 2:
            st("buffer_store_dwordx2 v[42:43], v19, s[8:11], s51 offen")
        a("s_mov_b64 exec, -1")
        if path == "A":
            a("s_branch L_ch_rdone")
    a("L_ch_rdone:")
    stamp(10)
    a(f"s_add_u32 s42, s42, {8*8192}\ns_add_u32 s49, s49, {H*4096}\ns_add_u32 s50, s50, {H*4096}")
    a("s_add_u32 s17, s17, 1\ns_branch L_ch_step")
    a("L_ch_last:")
    a("s_cmp_lg_u32 s37, 0\ns_cbranch_scc1 L_ch_nokm2")
    a("buffer_store_dwordx4 v[48:51], v22, s[8:11], s49 offen sc1")
    a("L_ch_nokm2:")
    a("v_cvt_pk_bf16_f32 v80, v40, v41\nv_cvt_pk_bf16_f32 v81, v42, v43")
    a("buffer_store_dwordx2 v[80:81], v23, s[8:11], s50 offen sc1")
    a("s_waitcnt vmcnt(0)\ns_barrier")
    if PROF:
        a("s_memrealtime s[74:75]\ns_lshl_b32 s76, s34, 5\ns_add_u32 s76, s76, s35\ns_add_u32 s76, s76, 2000\ns_lshl_b32 s76, s76, 2\ns_add_u32 s76, s76, " + str(WS_BYTES - 32768) + "\ns_waitcnt lgkmcnt(0)")
        a("v_mov_b32 v36, 0\nv_mov_b32 v37, s74\ns_mov_b64 exec, 1\nbuffer_store_dword v37, v36, s[8:11], s76 offen\ns_mov_b64 exec, -1")
    a("s_cmp_lg_u32 s16, 0\ns_cbranch_scc1 L_ch_done")
    a(f"s_mov_b64 exec, 1\nv_mov_b32 v36, 0\nv_mov_b32 v37, {NSEG}\nbuffer_store_dword v37, v36, s[8:11], s33 offen sc1")
    a("s_branch L_ch_done")
    a("L_ch_helper:")
    a(f"s_load_dwordx2 s[6:7], s[0:1], {KA['dbg']}\ns_waitcnt lgkmcnt(0)")
    a.srd(12, 6, 256)
    a("s_cmp_lg_u32 s16, 0\ns_cbranch_scc1 L_ch_htk")
    a("s_mov_b64 exec, 1\nv_mov_b32 v3, 192\nv_mov_b32 v4, 1")
    a("buffer_atomic_add v4, v3, s[12:15], 0 offen sc0 sc1\ns_waitcnt vmcnt(0)")
    a(f"v_mov_b32 v3, {L_MISC}\nds_write_b32 v3, v4\ns_waitcnt lgkmcnt(0)\ns_mov_b64 exec, -1")
    a("L_ch_htk:\ns_barrier")
    a(f"v_mov_b32 v3, {L_MISC}\nds_read_b32 v4, v3\ns_waitcnt lgkmcnt(0)\nv_readfirstlane_b32 s17, v4\ns_barrier")
    a("s_mov_b32 s73, s17")
    if PROF:
        a("s_memrealtime s[74:75]\ns_min_u32 s76, s17, 200\ns_add_u32 s76, s76, 1700\ns_lshl_b32 s76, s76, 2\ns_add_u32 s76, s76, " + str(WS_BYTES - 32768) + "\ns_waitcnt lgkmcnt(0)")
        a("v_mov_b32 v36, 0\nv_mov_b32 v37, s74\ns_mov_b64 exec, 1\nbuffer_store_dword v37, v36, s[8:11], s76 offen\ns_mov_b64 exec, -1")
    a("s_cmp_ge_u32 s17, 1680\ns_cbranch_scc1 L_ch_done")
    a("s_cmp_ge_u32 s17, 608\ns_cbranch_scc1 L_ch_h2")
    a("s_mov_b32 s55, 0")
    a("s_cmp_ge_u32 s17, 256\ns_cbranch_scc1 L_ch_hkv")
    a("s_lshr_b32 s18, s17, 7\ns_lshr_b32 s19, s17, 6\ns_and_b32 s19, s19, 1\ns_add_u32 s19, s19, 1\ns_and_b32 s29, s17, 63\ns_lshl_b32 s29, s29, 1\ns_mov_b32 s28, 2")
    a(f"s_lshl_b32 s55, s17, 2\ns_add_u32 s55, s55, {WS['FLAGS']+6144}")
    k_gemm1.body(a, "che", 2)
    a("s_branch L_ch_hend")
    a("L_ch_hkv:")
    a("s_sub_u32 s17, s17, 256")
    a("s_cmp_ge_u32 s17, 224\ns_cbranch_scc1 L_ch_hq")
    a("s_lshr_b32 s18, s17, 5\ns_add_u32 s18, s18, 1\ns_and_b32 s20, s17, 31")
    a("s_lshr_b32 s19, s20, 4\ns_add_u32 s19, s19, 1\ns_and_b32 s29, s20, 15\ns_lshl_b32 s29, s29, 3\ns_mov_b32 s28, 8")
    a(f"s_lshl_b32 s55, s18, 5\ns_add_u32 s55, s55, s20\ns_lshl_b32 s55, s55, 2\ns_add_u32 s55, s55, {WS['FLAGS']}")
    a("s_branch L_ch_hgo")
    a("L_ch_hq:")
    a("s_sub_u32 s17, s17, 224")
    a("s_lshr_b32 s18, s17, 4\ns_and_b32 s20, s17, 7\ns_and_b32 s21, s17, 8")
    a(f"s_lshl_b32 s55, s18, 3\ns_add_u32 s55, s55, s20\ns_lshl_b32 s55, s55, 2\ns_lshl_b32 s19, s21, 5\ns_add_u32 s55, s55, s19\ns_add_u32 s55, s55, {WS['FLAGS']+1536}")
    a("s_mov_b32 s19, 0\ns_lshl_b32 s29, s20, 4\ns_mov_b32 s28, 16")
    a("s_cmp_eq_u32 s21, 0\ns_cbranch_scc1 L_ch_hgo")
    a("s_mov_b32 s19, 3\ns_mul_i32 s29, s20, 7\ns_mov_b32 s28, 14\ns_cmp_lt_u32 s20, 6\ns_cbranch_scc1 L_ch_hgo")
    a("s_mov_b32 s28, 12\ns_cmp_eq_u32 s20, 6\ns_cselect_b32 s29, 42, 48")
    a("L_ch_hgo:")
    k_gemm1.body(a, "chh")
    a("L_ch_hend:")
    a("s_waitcnt vmcnt(0)\ns_barrier")
    if PROF:
        a("s_memrealtime s[74:75]\ns_mov_b32 s76, s73\ns_lshl_b32 s76, s76, 2\ns_add_u32 s76, s76, " + str(WS_BYTES - 32768) + "\ns_waitcnt lgkmcnt(0)")
        a("v_mov_b32 v36, 0\nv_mov_b32 v37, s74\ns_mov_b64 exec, 1\nbuffer_store_dword v37, v36, s[8:11], s76 offen\ns_mov_b64 exec, -1")
    a("s_cmp_eq_u32 s55, 0\ns_cbranch_scc1 L_ch_helper\ns_cmp_lg_u32 s16, 0\ns_cbranch_scc1 L_ch_helper")
    a("s_mov_b64 exec, 1\nv_mov_b32 v3, 0\nv_mov_b32 v4, 0\nbuffer_store_dword v4, v3, s[8:11], s55 offen sc1\ns_mov_b64 exec, -1")
    a("s_branch L_ch_helper")
    def wait_ge(n, need):
        l = a.label("chw")
        a(f"{l}:\nv_lshlrev_b32 v10, 2, v0\nv_cmp_gt_u32 vcc, {n}, v0\ns_mov_b64 exec, vcc")
        a(f"buffer_load_dword v11, v10, s[8:11], s70 offen sc1\ns_waitcnt vmcnt(0)\nv_cmp_gt_i32 vcc, {need}, v11\ns_mov_b64 exec, -1")
        a(f"s_cbranch_vccz {l}_d\ns_sleep 16\ns_branch {l}\n{l}_d:")
    a("L_ch_h2:")
    a("s_sub_u32 s17, s17, 608\ns_mul_hi_u32 s53, s17, 0xaaaaaab\ns_mul_i32 s18, s53, 24\ns_sub_u32 s54, s17, s18")
    a("s_cmp_lt_u32 s17, 720\ns_cbranch_scc1 L_ch_h3")
    a("s_sub_u32 s54, s17, 720\ns_mov_b32 s53, 30\ns_cmp_lt_u32 s54, 176\ns_cbranch_scc1 L_ch_h4\ns_sub_u32 s54, s54, 176\ns_mov_b32 s53, 31")
    a("L_ch_h4:")
    a("s_cmp_ge_u32 s54, 16\ns_cbranch_scc1 L_ch_hl")
    a("L_ch_h3:")
    a("s_cmp_ge_u32 s54, 16\ns_cbranch_scc1 L_ch_hf")
    a(f"s_and_b32 s52, s54, 7\ns_lshr_b32 s18, s53, 2\ns_lshl_b32 s18, s18, 3\ns_add_u32 s18, s18, s52\ns_lshl_b32 s18, s18, 2\ns_add_u32 s70, s18, {WS['FLAGS']+1536}")
    wait_ge(1, 0)
    a(f"s_lshl_b32 s18, s52, 5\ns_add_u32 s70, s18, {WS['FLAGS']+2048}\ns_lshl_b32 s71, s53, 1\ns_lshr_b32 s18, s54, 3\ns_add_u32 s72, s71, s18\ns_add_u32 s71, s72, 1")
    wait_ge(8, "s71")
    a("s_lshl_b32 s17, s72, 5\ns_lshl_b32 s18, s52, 2\ns_add_u32 s17, s17, s18\ns_add_u32 s17, s17, s16")
    k_attn.body(a)
    a(f"s_lshl_b32 s55, s53, 4\ns_add_u32 s55, s55, s54\ns_lshl_b32 s55, s55, 2\ns_add_u32 s55, s55, {WS['FLAGS']+2304}")
    a("s_branch L_ch_hend")
    a("L_ch_hf:")
    a("s_mov_b32 s17, s53\ns_sub_u32 s18, s54, 16\ns_mov_b32 s55, 0")
    def wa():
        a(f"s_lshl_b32 s70, s53, 6\ns_add_u32 s70, s70, {WS['FLAGS']+2304}")
        wait_ge(16, 0)
    def wb():
        a(f"s_lshr_b32 s70, s53, 2\ns_lshl_b32 s70, s70, 5\ns_add_u32 s70, s70, {WS['FLAGS']+1792}")
        wait_ge(8, 0)
    k_final.body(a, wa, wb)
    a("s_branch L_ch_hend")
    a("L_ch_hl:")
    a("s_mov_b32 s17, s53\ns_sub_u32 s54, s54, 16\ns_and_b32 s18, s54, 3\ns_lshr_b32 s19, s54, 2\ns_mov_b32 s55, 0")
    k_final.late_body(a, wa, wb)
    a("s_branch L_ch_hend")
    a("L_ch_done:\ns_endpgm")
    return name, GRID, 256, LDS, kd(name, 512, 96, 256)
```

```python
from common import *
GRID = 256
LDS = 4 * 20 * 1024
ST = 32
ACC = 140
RA = 220
T = 8

def body(a, wait_a, wait_b):
    a(f"s_load_dwordx2 s[6:7], s[0:1], {KA['out']}")
    a("s_waitcnt lgkmcnt(0)")
    a.srd(12, 6, S * DM * 2)
    a("v_and_b32 v1, 15, v0\nv_lshrrev_b32 v2, 4, v0\nv_lshlrev_b32 v3, 4, v0")
    a(f"s_lshl_b32 s19, s17, 6\ns_lshl_b32 s20, s16, 4\ns_add_u32 s19, s19, s20\nv_add_u32 v4, s19, v1")
    a(f"v_lshlrev_b32 v5, 2, v4\nbuffer_load_dword v7, v5, s[8:11], {WS['GATE']} offen" if False else
      f"v_lshlrev_b32 v5, 2, v4\ns_mov_b32 s21, {WS['GATE']}\nbuffer_load_dword v7, v5, s[8:11], s21 offen")
    a("v_mul_u32_u24 v4, 1280, v4\nv_lshlrev_b32 v5, 3, v2\nv_add_u32 v4, v4, v5\ns_mul_i32 s22, s18, 160")
    a("s_mul_i32 s23, s16, 20480\nv_add_u32 v5, s23, v3")
    a("s_lshl_b32 s23, s16, 10\nv_add_u32 v6, s23, v3\nv_add_u32 v9, 40960, v6")
    NST = 6
    def sreg(st, i):
        if st < 3:
            b = ST + 36 * st + 4 * i
            return f"v[{b}:{b+3}]"
        b = 36 * (st - 3) + 4 * i
        return f"a[{b}:{b+3}]"
    def load(st):
        for i in range(9):
            a(f"s_add_u32 s47, s{60+i}, s44")
            a(f"buffer_load_dwordx4 {sreg(st, i)}, v3, s[8:11], s47 offen{' sc1' if i >= 5 else ''}")
        a("s_add_u32 s45, s45, 1\ns_cmp_lt_u32 s45, s50\ns_cselect_b32 s47, 4096, 0\ns_add_u32 s44, s44, s47")
    def mfma(st):
        for i in range(5):
            for j in range(4):
                d = ACC + 4 * (i*4 + j)
                a(f"v_mfma_f32_16x16x32_bf16 v[{d}:{d+3}], {sreg(st, i)}, {sreg(st, 5+j)}, v[{d}:{d+3}]")
    def phase(tag):
        a("s_lshl_b32 s44, s16, 10\ns_mov_b32 s45, 0\ns_mov_b32 s46, 0")
        for st in range(NST - 1):
            load(st)
        for r in range(80):
            a(f"v_mov_b32 v{ACC+r}, 0")
        a(f"L_fn_loop{tag}:")
        for st in range(NST):
            load((st + NST - 1) % NST)
            a(f"s_waitcnt vmcnt({9*(NST-1)})")
            mfma(st)
            a(f"s_add_u32 s46, s46, 1\ns_cmp_ge_u32 s46, s50\ns_cbranch_scc1 L_fn_end{tag}")
        a(f"s_branch L_fn_loop{tag}")
        a(f"L_fn_end{tag}:")
        a("s_nop 7\ns_nop 3")
        for t in range(20):
            a(f"ds_write_b128 v5, v[{ACC+4*t}:{ACC+4*t+3}] offset:{1024*t}")
        a("s_waitcnt vmcnt(0) lgkmcnt(0)\ns_barrier")
        for i in range(5):
            for p in range(4):
                a(f"ds_read_b128 v[{ST+16*i+4*p}:{ST+16*i+4*p+3}], v{6 if p < 2 else 9} offset:{20480*(p%2) + 4096*i}")
        a("s_waitcnt lgkmcnt(0)\ns_barrier")
        for i in range(5):
            b = ST + 16 * i
            for r in range(4):
                a(f"v_add_f32 v{b+r}, v{b+r}, v{b+4+r}\nv_add_f32 v{b+8+r}, v{b+8+r}, v{b+12+r}")
            for r in range(4):
                a(f"v_add_f32 v{b+r}, v{b+r}, v{b+8+r}")
            a(f"v_cvt_pk_bf16_f32 v{b+4}, v{b}, v{b+1}\nv_cvt_pk_bf16_f32 v{b+5}, v{b+2}, v{b+3}")
            a(f"v_lshlrev_b32 v{b}, 16, v{b+4}\nv_and_b32 v{b+1}, 0xffff0000, v{b+4}\nv_lshlrev_b32 v{b+2}, 16, v{b+5}\nv_and_b32 v{b+3}, 0xffff0000, v{b+5}")
    wait_b()
    a(f"s_mul_i32 s24, s18, {5*54*1024}\ns_add_u32 s24, s24, {WS['WDF']}")
    for i in range(5):
        a(f"s_add_u32 s{60+i}, s24, {i*54*1024}")
    a(f"s_mul_i32 s24, s17, {4*54*1024}\ns_add_u32 s24, s24, {WS['HF']}")
    for j in range(4):
        a(f"s_add_u32 s{65+j}, s24, {j*54*1024}")
    a("s_cmp_lt_u32 s16, 2\ns_cselect_b32 s50, 14, 13")
    phase("b")
    a(f"v_sub_f32 v{T}, 1.0, v7\nv_cvt_pk_bf16_f32 v{T}, v{T}, v{T}\nv_lshlrev_b32 v{T}, 16, v{T}")
    for i in range(5):
        for r in range(4):
            a(f"v_mul_f32 v{RA+4*i+r}, v{T}, v{ST+16*i+r}")
        a(f"v_cvt_pk_bf16_f32 v{RA+4*i}, v{RA+4*i}, v{RA+4*i+1}\nv_cvt_pk_bf16_f32 v{RA+4*i+1}, v{RA+4*i+2}, v{RA+4*i+3}")
    wait_a()
    a(f"s_mul_i32 s24, s18, {5*128*1024}\ns_add_u32 s24, s24, {WS['WOF']}")
    for i in range(5):
        a(f"s_add_u32 s{60+i}, s24, {i*128*1024}")
    a(f"s_lshl_b32 s24, s17, 19\ns_add_u32 s24, s24, {WS['OX']}")
    for j in range(4):
        a(f"s_add_u32 s{65+j}, s24, {j*128*1024}")
    a("s_mov_b32 s50, 32")
    phase("a")
    for i in range(5):
        b = ST + 16 * i
        for r in range(4):
            a(f"v_mul_f32 v{b+r}, v7, v{b+r}")
        a(f"v_cvt_pk_bf16_f32 v{b+4}, v{b}, v{b+1}\nv_cvt_pk_bf16_f32 v{b+5}, v{b+2}, v{b+3}")
        a(f"v_lshlrev_b32 v{b}, 16, v{b+4}\nv_and_b32 v{b+1}, 0xffff0000, v{b+4}\nv_lshlrev_b32 v{b+2}, 16, v{b+5}\nv_and_b32 v{b+3}, 0xffff0000, v{b+5}")
        a(f"v_lshlrev_b32 v{b+8}, 16, v{RA+4*i}\nv_and_b32 v{b+9}, 0xffff0000, v{RA+4*i}\nv_lshlrev_b32 v{b+10}, 16, v{RA+4*i+1}\nv_and_b32 v{b+11}, 0xffff0000, v{RA+4*i+1}")
        for r in range(4):
            a(f"v_add_f32 v{b+r}, v{b+r}, v{b+8+r}")
        a(f"v_cvt_pk_bf16_f32 v{b+4}, v{b}, v{b+1}\nv_cvt_pk_bf16_f32 v{b+5}, v{b+2}, v{b+3}")
        a(f"buffer_store_dwordx2 v[{b+4}:{b+5}], v4, s[12:15], s22 offen offset:{32*i}")

def late_body(a, wait_a, wait_b):
    a(f"s_load_dwordx2 s[6:7], s[0:1], {KA['out']}")
    a("s_waitcnt lgkmcnt(0)")
    a.srd(12, 6, S * DM * 2)
    a("v_and_b32 v1, 15, v0\nv_lshrrev_b32 v2, 4, v0\nv_lshlrev_b32 v3, 4, v0")
    a("s_lshl_b32 s20, s17, 2\ns_add_u32 s20, s20, s18")
    a(f"s_lshl_b32 s21, s20, 4\nv_add_u32 v4, s21, v1\nv_lshlrev_b32 v5, 2, v4\ns_mov_b32 s21, {WS['GATE']}\nbuffer_load_dword v7, v5, s[8:11], s21 offen")
    a("v_mul_u32_u24 v4, 1280, v4\nv_lshlrev_b32 v5, 3, v2\nv_add_u32 v4, v4, v5\ns_lshl_b32 s22, s19, 5")
    a("s_lshl_b32 s23, s16, 10\nv_add_u32 v5, s23, v3\nv_add_u32 v9, s23, v3")
    def reg(i):
        return f"v[{32+4*i}:{35+4*i}]" if i < 48 else f"a[{4*(i-48)}:{4*(i-48)+3}]"
    def phase(nk, last_short, acc):
        for t in range(nk):
            if last_short and t == nk - 1:
                a("s_cmp_lt_u32 s16, 2\ns_cselect_b32 s47, 0, 4096\ns_sub_u32 s44, s60, s47\ns_sub_u32 s45, s61, s47")
                a(f"s_add_u32 s44, s44, {t*4096}\ns_add_u32 s45, s45, {t*4096}")
            else:
                a(f"s_add_u32 s44, s60, {t*4096}\ns_add_u32 s45, s61, {t*4096}")
            a(f"buffer_load_dwordx4 {reg(2*t)}, v9, s[8:11], s44 offen\nbuffer_load_dwordx4 {reg(2*t+1)}, v9, s[8:11], s45 offen sc1")
        for t in range(nk):
            a(f"s_waitcnt vmcnt({min(63, 2*(nk-1-t))})")
            if last_short and t == nk - 1:
                l = a.label("fl")
                a(f"s_cmp_ge_u32 s16, 2\ns_cbranch_scc1 {l}")
            a(f"v_mfma_f32_16x16x32_bf16 v[{acc}:{acc+3}], {reg(2*t)}, {reg(2*t+1)}, {'0' if t == 0 else f'v[{acc}:{acc+3}]'}")
            if last_short and t == nk - 1:
                a(f"{l}:")
        a("s_nop 7\ns_nop 3")
        a(f"ds_write_b128 v5, v[{acc}:{acc+3}]\ns_waitcnt lgkmcnt(0)\ns_barrier")
        for p in range(4):
            a(f"ds_read_b128 v[{32+4*p}:{35+4*p}], v3 offset:{1024*p}")
        a("s_waitcnt lgkmcnt(0)\ns_barrier")
        for r in range(4):
            a(f"v_add_f32 v{32+r}, v{32+r}, v{36+r}\nv_add_f32 v{40+r}, v{40+r}, v{44+r}")
        for r in range(4):
            a(f"v_add_f32 v{32+r}, v{32+r}, v{40+r}")
        a("v_cvt_pk_bf16_f32 v36, v32, v33\nv_cvt_pk_bf16_f32 v37, v34, v35")
        a("v_lshlrev_b32 v32, 16, v36\nv_and_b32 v33, 0xffff0000, v36\nv_lshlrev_b32 v34, 16, v37\nv_and_b32 v35, 0xffff0000, v37")
    wait_b()
    a(f"s_mul_i32 s60, s19, {54*1024}\ns_add_u32 s60, s60, {WS['WDF']}\ns_mul_i32 s61, s20, {54*1024}\ns_add_u32 s61, s61, {WS['HF']}")
    phase(14, True, 12)
    a(f"v_sub_f32 v{T}, 1.0, v7\nv_cvt_pk_bf16_f32 v{T}, v{T}, v{T}\nv_lshlrev_b32 v{T}, 16, v{T}")
    for r in range(4):
        a(f"v_mul_f32 v{32+r}, v{T}, v{32+r}")
    a("v_cvt_pk_bf16_f32 v16, v32, v33\nv_cvt_pk_bf16_f32 v17, v34, v35")
    wait_a()
    a(f"s_lshl_b32 s60, s19, 17\ns_add_u32 s60, s60, {WS['WOF']}\ns_lshl_b32 s61, s20, 17\ns_add_u32 s61, s61, {WS['OX']}")
    phase(32, False, 12)
    for r in range(4):
        a(f"v_mul_f32 v{32+r}, v7, v{32+r}")
    a("v_cvt_pk_bf16_f32 v36, v32, v33\nv_cvt_pk_bf16_f32 v37, v34, v35")
    a("v_lshlrev_b32 v32, 16, v36\nv_and_b32 v33, 0xffff0000, v36\nv_lshlrev_b32 v34, 16, v37\nv_and_b32 v35, 0xffff0000, v37")
    a("v_lshlrev_b32 v40, 16, v16\nv_and_b32 v41, 0xffff0000, v16\nv_lshlrev_b32 v42, 16, v17\nv_and_b32 v43, 0xffff0000, v17")
    for r in range(4):
        a(f"v_add_f32 v{32+r}, v{32+r}, v{40+r}")
    a("v_cvt_pk_bf16_f32 v36, v32, v33\nv_cvt_pk_bf16_f32 v37, v34, v35")
    l = a.label("fl")
    a(f"s_cmp_lg_u32 s16, 0\ns_cbranch_scc1 {l}\nbuffer_store_dwordx2 v[36:37], v4, s[12:15], s22 offen\n{l}:")
```

```python
from common import *
GRID = 256
UB = 40960
LDS = 3 * UB
ACC = 64
AB = 96
GH = 128
TMP = 144

def f32bits(x):
    import struct
    return struct.unpack("<I", struct.pack("<f", x))[0]

def xreg(tt, ks):
    i = tt * 20 + ks
    return f"a[{4*i}:{4*i+3}]" if i < 64 else f"v[{192+4*(i-64)}:{195+4*(i-64)}]"

def gen(a):
    name = "gemm1_kernel"
    a.kernel_begin(name)
    a(f"s_cmp_ge_u32 s2, {GRID}\ns_cbranch_scc1 L_g1_done")
    a(f"s_load_dwordx2 s[4:5], s[0:1], {KA['ws']}")
    a("s_waitcnt lgkmcnt(0)")
    a.srd(8, 4, WS_BYTES)
    a("v_lshrrev_b32 v1, 6, v0\ns_nop 0\nv_readfirstlane_b32 s16, v1\nv_and_b32 v0, 63, v0")
    a("s_mov_b32 s18, 0\ns_lshr_b32 s19, s2, 7\ns_add_u32 s19, s19, 1\ns_and_b32 s29, s2, 127\ns_mov_b32 s28, 1")
    body(a, "g1")
    a("L_g1_done:\ns_endpgm")
    return name, GRID, 256, LDS, kd(name, 512, 96, 256)

def body(a, P, TT=4):
    WT = "" if P == "g1" else " sc1"
    a(f"s_load_dwordx2 s[6:7], s[0:1], {KA['x']}")
    a("s_waitcnt lgkmcnt(0)")
    a.srd(12, 6, S * DM * 2)
    a("v_and_b32 v1, 15, v0\nv_lshrrev_b32 v2, 4, v0\nv_lshlrev_b32 v8, 4, v0")
    a("s_lshl_b32 s21, s18, 2\ns_add_u32 s21, s21, s16")
    a(f"s_mul_i32 s22, s21, {TT*16*1280}")
    a("v_mul_u32_u24 v3, 1280, v1\nv_lshlrev_b32 v4, 4, v2\nv_add_u32 v3, v3, v4")
    for tt in range(TT):
        a(f"s_add_u32 s23, s22, {tt*16*1280}")
        for ks in range(20):
            a(f"buffer_load_dwordx4 {xreg(tt, ks)}, v3, s[12:15], s23 offen offset:{64*ks}")
    a(f"s_cmp_eq_u32 s19, 3\ns_cbranch_scc1 L_{P}_ffnsetup")
    a(f"s_mul_i32 s24, s19, {WS['WKF']-WS['WQF']}\ns_add_u32 s24, s24, {WS['WQF']}")
    a(f"s_mul_i32 s26, s29, {UB}\ns_add_u32 s24, s24, s26\ns_add_u32 s25, s24, {UB}\ns_mov_b32 s27, {2*UB}")
    a(f"s_branch L_{P}_setup2")
    a(f"L_{P}_ffnsetup:")
    a(f"s_mul_i32 s26, s29, {UB}\ns_add_u32 s24, s26, {WS['WGF']}\ns_add_u32 s25, s26, {WS['WUF']}\ns_mov_b32 s27, {UB}")
    a(f"L_{P}_setup2:")
    assert WS['WVF'] - WS['WKF'] == WS['WKF'] - WS['WQF']
    a("s_mul_i32 s30, s16, 10240\nv_add_u32 v9, s30, v8")
    def issue(sbuf):
        a(f"s_add_u32 s31, s{sbuf}, s30\ns_mov_b32 m0, s31\ns_nop 0")
        for f in range(10):
            if f == 4 or f == 8:
                a(f"s_add_u32 s31, s31, 4096\ns_mov_b32 m0, s31\ns_add_u32 s33, s24, {f*1024}\ns_nop 0")
            src = "s24" if f < 4 else "s33"
            a(f"buffer_load_dwordx4 v9, s[8:11], {src} offen offset:{(f%4)*1024} lds")
        a("s_add_u32 s33, s24, s27\ns_mov_b32 s24, s25\ns_mov_b32 s25, s33")
    a(f"s_mov_b32 s34, 0\ns_mov_b32 s35, {UB}\ns_mov_b32 s36, {2*UB}")
    issue(34); issue(35)
    if TT == 4:
        issue(36)
    a("s_mov_b32 s37, 0")
    a(f"s_mul_i32 s38, s21, {(TT//2)*H*8192}")
    a(f"s_mul_i32 s39, s19, {WS['KX']-WS['QX']}\ns_add_u32 s39, s39, {WS['QX']}\ns_add_u32 s38, s38, s39")
    assert WS['VX'] - WS['KX'] == WS['KX'] - WS['QX']
    a(f"s_mul_i32 s40, s21, {4*54*1024}\ns_add_u32 s40, s40, {WS['HF']}")
    a(f"s_waitcnt vmcnt({20 if TT == 4 else 10})\ns_barrier")
    a(f"L_{P}_unit:")
    a("v_add_u32 v10, s34, v8")
    a(f"s_cmp_eq_u32 s19, 2\ns_cbranch_scc1 L_{P}_cv")
    def compute(swapped):
        for j in range(3):
            a(f"ds_read_b128 v[{AB+8*j}:{AB+8*j+3}], v10 offset:{1024*j}\nds_read_b128 v[{AB+8*j+4}:{AB+8*j+7}], v10 offset:{20480+1024*j}")
        for ks in range(20):
            if ks + 3 < 20:
                j = (ks + 3) % 4
                a(f"ds_read_b128 v[{AB+8*j}:{AB+8*j+3}], v10 offset:{1024*(ks+3)}\nds_read_b128 v[{AB+8*j+4}:{AB+8*j+7}], v10 offset:{20480+1024*(ks+3)}")
                a("s_waitcnt lgkmcnt(6)")
            else:
                a(f"s_waitcnt lgkmcnt({2*(19-ks)})")
            j = ks % 4
            for t in range(2):
                for tt in range(TT):
                    d = ACC + (t*4+tt)*4
                    w = f"v[{AB+8*j+4*t}:{AB+8*j+4*t+3}]"
                    c = "0" if ks == 0 else f"v[{d}:{d+3}]"
                    if swapped:
                        a(f"v_mfma_f32_16x16x32_bf16 v[{d}:{d+3}], {xreg(tt, ks)}, {w}, {c}")
                    else:
                        a(f"v_mfma_f32_16x16x32_bf16 v[{d}:{d+3}], {w}, {xreg(tt, ks)}, {c}")
    compute(False)
    a(f"s_branch L_{P}_cd")
    a(f"L_{P}_cv:")
    compute(True)
    a(f"L_{P}_cd:")
    a(f"s_add_u32 s41, s37, 2\ns_cmp_lt_u32 s41, s28\ns_cbranch_scc1 L_{P}_w10\ns_waitcnt vmcnt(0)\ns_branch L_{P}_w\nL_{P}_w10:\ns_waitcnt vmcnt(10)\nL_{P}_w:")
    a("s_nop 7")
    a(f"s_cmp_eq_u32 s19, 3\ns_cbranch_scc1 L_{P}_effn")
    a(f"s_cmp_eq_u32 s19, 2\ns_cbranch_scc1 L_{P}_ev")
    a("s_add_u32 s41, s29, s37\ns_lshr_b32 s42, s41, 2\ns_lshl_b32 s42, s42, 13\ns_and_b32 s41, s41, 3\ns_lshl_b32 s41, s41, 10\ns_add_u32 s41, s41, s42\ns_add_u32 s41, s41, s38")
    for tt in range(TT):
        d0 = ACC + tt*4; d1 = ACC + (4+tt)*4; o = TMP + 4*tt
        a(f"v_cvt_pk_bf16_f32 v{o}, v{d0}, v{d0+1}\nv_cvt_pk_bf16_f32 v{o+1}, v{d0+2}, v{d0+3}")
        a(f"v_cvt_pk_bf16_f32 v{o+2}, v{d1}, v{d1+1}\nv_cvt_pk_bf16_f32 v{o+3}, v{d1+2}, v{d1+3}")
        a(f"s_add_u32 s42, s41, {(tt>>1)*H*8192 + (tt&1)*4096}")
        a(f"buffer_store_dwordx4 v[{o}:{o+3}], v8, s[8:11], s42 offen{WT}")
    a(f"s_branch L_{P}_ed")
    a(f"L_{P}_ev:")
    a("s_add_u32 s41, s29, s37\ns_lshl_b32 s41, s41, 11\ns_add_u32 s41, s41, s38")
    for t in range(2):
        for sg in range(TT//2):
            d0 = ACC + (t*4+2*sg)*4; d1 = d0 + 4; o = TMP + 4*(t*2+sg)
            a(f"v_cvt_pk_bf16_f32 v{o}, v{d0}, v{d0+1}\nv_cvt_pk_bf16_f32 v{o+1}, v{d0+2}, v{d0+3}")
            a(f"v_cvt_pk_bf16_f32 v{o+2}, v{d1}, v{d1+1}\nv_cvt_pk_bf16_f32 v{o+3}, v{d1+2}, v{d1+3}")
            a(f"s_add_u32 s42, s41, {sg*H*8192}")
            a(f"buffer_store_dwordx4 v[{o}:{o+3}], v8, s[8:11], s42 offen offset:{t*1024}{WT}")
    a(f"s_branch L_{P}_ed")
    a(f"L_{P}_effn:")
    a(f"s_and_b32 s41, s37, 1\ns_cmp_eq_u32 s41, 1\ns_cbranch_scc1 L_{P}_eup")
    for i in range(8):
        d = ACC + 4*i
        a(f"v_cvt_pk_bf16_f32 v{GH+2*i}, v{d}, v{d+1}\nv_cvt_pk_bf16_f32 v{GH+2*i+1}, v{d+2}, v{d+3}")
    a(f"s_branch L_{P}_ed")
    a(f"L_{P}_eup:")
    C1 = -2.0 * 0.7978845608028654 * 1.4426950408889634
    C2 = C1 * 0.044715
    a(f"v_mov_b32 v20, {hex(f32bits(C1))}\nv_mov_b32 v21, {hex(f32bits(C2))}\nv_mov_b32 v22, 0xffff0000")
    a("s_lshr_b32 s41, s37, 1\ns_add_u32 s41, s41, s29\ns_lshl_b32 s41, s41, 10\ns_add_u32 s41, s41, s40")
    for i in range(8):
        d = ACC + 4*i
        T = TMP + 16
        a(f"v_cvt_pk_bf16_f32 v{T}, v{d}, v{d+1}\nv_cvt_pk_bf16_f32 v{T+1}, v{d+2}, v{d+3}")
        for r in range(4):
            src_g = GH + 2*i + (r >> 1); src_u = T + (r >> 1)
            g = T + 4 + r; u = T + 8 + r; z = T + 12 + r
            if r & 1:
                a(f"v_and_b32 v{g}, v22, v{src_g}\nv_and_b32 v{u}, v22, v{src_u}")
            else:
                a(f"v_lshlrev_b32 v{g}, 16, v{src_g}\nv_lshlrev_b32 v{u}, 16, v{src_u}")
        for r in range(4):
            g = T + 4 + r; z = T + 12 + r
            a(f"v_mul_f32 v{z}, v{g}, v{g}\nv_fma_f32 v{z}, v{z}, v21, v20\nv_mul_f32 v{z}, v{z}, v{g}")
        for r in range(4):
            z = T + 12 + r
            a(f"v_exp_f32 v{z}, v{z}")
        for r in range(4):
            z = T + 12 + r
            a(f"v_add_f32 v{z}, 1.0, v{z}")
        for r in range(4):
            z = T + 12 + r
            a(f"v_rcp_f32 v{z}, v{z}")
        a("s_nop 0")
        for r in range(4):
            g = T + 4 + r; z = T + 12 + r
            a(f"v_mul_f32 v{z}, v{z}, v{g}")
        a(f"v_cvt_pk_bf16_f32 v{T+4}, v{T+12}, v{T+13}\nv_cvt_pk_bf16_f32 v{T+5}, v{T+14}, v{T+15}")
        a(f"v_lshlrev_b32 v{T+12}, 16, v{T+4}\nv_and_b32 v{T+13}, v22, v{T+4}\nv_lshlrev_b32 v{T+14}, 16, v{T+5}\nv_and_b32 v{T+15}, v22, v{T+5}")
        for r in range(4):
            a(f"v_mul_f32 v{T+12+r}, v{T+12+r}, v{T+8+r}")
        t, tt = divmod(i, 4)
        o = TMP + 4*tt + 2*t
        a(f"v_cvt_pk_bf16_f32 v{o}, v{T+12}, v{T+13}\nv_cvt_pk_bf16_f32 v{o+1}, v{T+14}, v{T+15}")
    for tt in range(4):
        a(f"s_add_u32 s42, s41, {tt*54*1024}")
        a(f"buffer_store_dwordx4 v[{TMP+4*tt}:{TMP+4*tt+3}], v8, s[8:11], s42 offen{WT}")
    a(f"L_{P}_ed:")
    a("s_barrier")
    a(f"s_add_u32 s41, s37, 3\ns_cmp_ge_u32 s41, s28\ns_cbranch_scc1 L_{P}_noissue")
    issue(34)
    a(f"L_{P}_noissue:")
    a("s_mov_b32 s41, s34\ns_mov_b32 s34, s35\ns_mov_b32 s35, s36\ns_mov_b32 s36, s41")
    a(f"s_add_u32 s37, s37, 1\ns_cmp_lt_u32 s37, s28\ns_cbranch_scc1 L_{P}_unit")
```
